```python
import torch

def _softmax(x, axis=-1):
    return torch.softmax(x, dim=axis)
def _gelu(x):
    return torch.nn.functional.gelu(x, approximate="tanh")
def _silu(x):
    return torch.nn.functional.silu(x)
def _sigmoid(x):
    return torch.sigmoid(x)
def _layernorm(x, axis=-1, eps=1e-5):
    m = x.mean(dim=axis, keepdim=True)
    v = x.var(dim=axis, keepdim=True, unbiased=False)
    return (x - m) / torch.sqrt(v + eps)
def _scatter_add(tgt, idx, src, axis=0):
    return tgt.clone().index_add_(axis, idx, src)
def _segment_sum(src, seg, n):
    out = torch.zeros((n,) + src.shape[1:], dtype=src.dtype)
    return out.index_add_(0, seg, src)
def _pad(x, pw):
    flat = tuple(v for pair in reversed(pw) for v in pair)
    return torch.nn.functional.pad(x, flat)

kernel_name = 'sequential_preLN__sliding_block__dense_activation_relu__prompt'

def setup_inputs():

    _w = (lambda a: (lambda t: t.to(torch.bfloat16) if t.is_floating_point() else t)(torch.as_tensor(a)))
    def _A_setup():
        B, S, D = 1, 2048, 512
        return {
            "x": _w((lambda *s: torch.randn(*s, dtype=torch.bfloat16) * 0.05)(B, S, D)),
            "wqkv": _w((lambda *s: torch.randn(*s, dtype=torch.bfloat16) * 0.05)(D, 3 * D)),
            "wo": _w((lambda *s: torch.randn(*s, dtype=torch.bfloat16) * 0.05)(D, D)),
        }
    _A_in = _A_setup()

    def _B_setup():
        B, S, D, Dff = 1, 2048, 512, 1376
        return {
            "x": _w((lambda *s: torch.randn(*s, dtype=torch.bfloat16) * 0.05)(B, S, D)),
            "w1": _w((lambda *s: torch.randn(*s, dtype=torch.bfloat16) * 0.05)(D, Dff)),
            "w2": _w((lambda *s: torch.randn(*s, dtype=torch.bfloat16) * 0.05)(Dff, D)),
        }
    _B_in = _B_setup()

    return {
        "A_x": _A_in["x"],
        "A_wqkv": _A_in["wqkv"],
        "A_wo": _A_in["wo"],
        "B_x": _B_in["x"],
        "B_w1": _B_in["w1"],
        "B_w2": _B_in["w2"],
    }

def reference(A_x, A_wqkv, A_wo, B_x, B_w1, B_w2):
    def _A_ref(x, wqkv, wo):
        B, S, D = x.shape
        H = 32; Dh = D // H; W = 256
        qkv = (lambda x, *d: x.permute(*d))((x @ wqkv).reshape(B, S, 3, H, Dh), 2, 0, 3, 1, 4)
        q, k, v = qkv[0], qkv[1], qkv[2]
        scores = torch.einsum("bhqd,bhkd->bhqk", q, k) * (Dh ** -0.5)
        idx = torch.arange(S)
        mask = (idx[:, None] - idx[None, :] >= 0) & (idx[:, None] - idx[None, :] < W)
        scores = torch.where(mask[None, None], scores, -1e9)
        p = _softmax(scores, axis=-1)
        o = torch.einsum("bhqk,bhkd->bhqd", p, v)
        return (lambda x, *d: x.permute(*d))(o, 0, 2, 1, 3).reshape(B, S, D) @ wo

    def _B_ref(x, w1, w2):
        h = torch.einsum("bsd,df->bsf", x, w1)
        zero = torch.zeros_like(h)
        h = torch.maximum(h, zero)
        return torch.einsum("bsf,fd->bsd", h, w2)

    x = A_x
    h = x + _A_ref(_layernorm(x, axis=-1), A_wqkv, A_wo)
    h2 = h + _B_ref(_layernorm(h, axis=-1), B_w1, B_w2)
    return h2
```

```python
import sys

S, D, DFF = 2048, 512, 1376
WS_QK = 0
WS_VT = 4 << 20
WS_O = 6 << 20
WS_H = 8 << 20
WS_H1 = 10 << 20
KA_X, KA_WQKV, KA_WO, KA_BX, KA_W1, KA_W2, KA_OUT, KA_DBG, KA_WS = [8 * i for i in range(9)]


class Asm:
    def __init__(self):
        self.lines = []

    def __call__(self, s):
        self.lines.append("    " + s)

    def label(self, l):
        self.lines.append(l + ":")

    def c(self, s):
        self.lines.append("    ; " + s)

    def nop(self, n):
        while n > 0:
            k = min(n, 16)
            self(f"s_nop {k - 1}")
            n -= k


class VM:
    def __init__(self, a):
        self.a = a
        self.q = []

    def issue(self, tag):
        self.q.append(tag)
        assert len(self.q) <= 63, "too many outstanding vmem ops"

    def wait(self, tags):
        idx = [i for i, t in enumerate(self.q) if t in tags]
        if not idx:
            return
        i = max(idx)
        n = len(self.q) - 1 - i
        self.a(f"s_waitcnt vmcnt({n})")
        self.q = self.q[i + 1:]

    def wait_all(self):
        if self.q:
            self.a("s_waitcnt vmcnt(0)")
            self.q = []


def srd(a, sd, sbase, nbytes, off=0):
    if off:
        a(f"s_add_u32 s{sd}, s{sbase}, {off}")
        a(f"s_addc_u32 s{sd + 1}, s{sbase + 1}, 0")
    else:
        a(f"s_mov_b32 s{sd}, s{sbase}")
        a(f"s_mov_b32 s{sd + 1}, s{sbase + 1}")
    a(f"s_mov_b32 s{sd + 2}, {nbytes}")
    a(f"s_mov_b32 s{sd + 3}, 0x00020000")


def header(a, name):
    a.lines.append(f".globl {name}")
    a.lines.append(".p2align 8")
    a.lines.append(f".type {name},@function")
    a.label(name)


def descriptor(name, nvgpr, nsgpr=100):
    acc = (nvgpr + 3) // 4 * 4
    return "\n".join([
        f".amdhsa_kernel {name}",
        f"  .amdhsa_next_free_vgpr {nvgpr}",
        f"  .amdhsa_next_free_sgpr {nsgpr}",
        f"  .amdhsa_accum_offset {acc}",
        "  .amdhsa_group_segment_fixed_size 0",
        "  .amdhsa_kernarg_size 72",
        "  .amdhsa_user_sgpr_count 2",
        "  .amdhsa_user_sgpr_kernarg_segment_ptr 1",
        "  .amdhsa_system_sgpr_workgroup_id_x 1",
        ".end_amdhsa_kernel",
    ])


def vr(b, n=1):
    return f"v{b}" if n == 1 else f"v[{b}:{b + n - 1}]"


def gemm_kernel(name, *, a_src, lda, a_bytes, w_ka, ldw, w_bytes, N, chunks, BM, BN, WGM, WGN,
                NB, NA, ln, epi, tiles_n, ntiles):
    a = Asm()
    vm = VM(a)
    RT = BM // WGM // 16
    CT = BN // WGN // 16
    NP = BN // 32
    KSM = max(chunks)
    PSTR = KSM * 2048
    BUFB = NP * PSTR
    lds_bytes = NB * BUFB
    C = len(chunks)
    kstart = [32 * sum(chunks[:i]) for i in range(C)]

    vA = 16
    nA = NA * KSM * RT * 4
    vB = vA + nA
    nB = 2 * CT * 4
    vC = vB + nB
    nC = RT * CT * 4
    vR = vC + nC
    nR = RT * CT * 2 if epi[0] == "resid" else 0
    vT = vR + nR
    tb = {}
    nv_misc_end = 16

    def A_reg(ring, ks, rt):
        return vA + ((ring * KSM + ks) * RT + rt) * 4

    def B_reg(s, ct):
        return vB + (s * CT + ct) * 4

    def C_reg(rt, ct):
        return vC + (rt * CT + ct) * 4

    sSA, sSW, sSO, sSR = 8, 12, 16, 20
    s_w, s_m0, s_n0, s_t0, s_t1, s_t2, s_wm, s_wn, s_mw, s_nw = 24, 25, 26, 27, 28, 29, 30, 31, 32, 33

    header(a, name)
    a(f"s_cmp_ge_u32 s2, {ntiles}")
    a(f"s_cbranch_scc1 {name}_end")
    a(f"s_load_dwordx2 s[4:5], s[0:1], {a_src[0]}")
    a(f"s_load_dwordx2 s[6:7], s[0:1], {w_ka}")
    a(f"s_load_dwordx2 s[34:35], s[0:1], {KA_WS}")
    a(f"s_load_dwordx2 s[36:37], s[0:1], {KA_OUT}")
    a(f"s_load_dwordx2 s[38:39], s[0:1], {KA_X}")
    magic = (1 << 32) // tiles_n + 1
    a(f"s_mov_b32 s{s_t0}, {magic}")
    a(f"s_mul_hi_u32 s{s_t1}, s2, s{s_t0}")
    a(f"s_mul_i32 s{s_t2}, s{s_t1}, {tiles_n}")
    a(f"s_sub_u32 s{s_t2}, s2, s{s_t2}")
    a(f"s_mul_i32 s{s_m0}, s{s_t1}, {BM}")
    a(f"s_mul_i32 s{s_n0}, s{s_t2}, {BN}")
    a("v_lshrrev_b32 v1, 6, v0")
    a("v_and_b32 v2, 63, v0")
    a.nop(1)
    a(f"v_readfirstlane_b32 s{s_w}, v1")
    a("v_and_b32 v3, 15, v2")
    a("v_lshrrev_b32 v4, 4, v2")
    a.nop(2)
    if WGN == 1:
        a(f"s_mov_b32 s{s_wm}, s{s_w}")
        a(f"s_mov_b32 s{s_wn}, 0")
    else:
        a(f"s_lshr_b32 s{s_wm}, s{s_w}, 1")
        a(f"s_and_b32 s{s_wn}, s{s_w}, 1")
    a(f"s_mul_i32 s{s_mw}, s{s_wm}, {16 * RT}")
    a(f"s_add_u32 s{s_mw}, s{s_mw}, s{s_m0}")
    a(f"s_mul_i32 s{s_nw}, s{s_wn}, {16 * CT}")
    a(f"s_add_u32 s{s_nw}, s{s_nw}, s{s_n0}")
    a("s_waitcnt lgkmcnt(0)")
    srd(a, sSA, 4, a_src[1] + a_bytes, 0)
    srd(a, sSW, 6, w_bytes, 0)
    a(f"s_mov_b32 s{s_t0}, {lda}")
    a(f"v_mul_lo_u32 v5, v3, s{s_t0}")
    a("v_lshl_add_u32 v5, v4, 4, v5")
    a("v_lshrrev_b32 v6, 2, v2")
    a(f"s_mov_b32 s{s_t0}, {ldw}")
    a(f"v_mul_lo_u32 v6, v6, s{s_t0}")
    a("v_lshrrev_b32 v7, 5, v2")
    a("v_lshlrev_b32 v7, 1, v7")
    a("v_and_b32 v8, 3, v2")
    a("v_xor_b32 v7, v7, v8")
    a("v_lshl_add_u32 v6, v7, 4, v6")

    a("v_bfe_u32 v7, v2, 2, 2")
    a("v_lshl_add_u32 v7, v4, 3, v7")
    a("v_lshlrev_b32 v7, 6, v7")
    a("v_lshl_add_u32 v7, v8, 3, v7")
    a("v_and_b32 v9, 1, v4")
    a("v_lshlrev_b32 v9, 5, v9")
    a("v_add_u32 v10, v7, v9")
    a("v_xor_b32 v9, 32, v9")
    a("v_add_u32 v11, v7, v9")
    if WGN > 1:
        a(f"s_mul_i32 s{s_t0}, s{s_wn}, {PSTR * (CT // 2)}")
        a(f"v_add_u32 v10, s{s_t0}, v10")
        a(f"v_add_u32 v11, s{s_t0}, v11")

    nT = [0]

    def tr_base(hf, seg):
        key = (hf, seg)
        if key not in tb:
            raise KeyError(key)
        return tb[key]

    segs = set()
    for b in range(NB):
        for pp in range(CT // 2 if WGN > 1 else NP):
            for ks in range(KSM):
                off = b * BUFB + pp * PSTR + ks * 2048
                segs.add(off >> 15)
    for seg in sorted(segs):
        for hf in (0, 1):
            r = vT + nT[0]
            nT[0] += 1
            tb[(hf, seg)] = r
            if seg == 0:
                a(f"v_mov_b32 v{r}, v{10 + hf}")
            else:
                a(f"v_add_u32 v{r}, {seg << 15}, v{10 + hf}")
    nvgpr = vT + nT[0]
    assert nvgpr <= 256, nvgpr

    def issue_A(c):
        ring = c % NA
        for rt in range(RT):
            a(f"s_add_u32 s{s_t0}, s{s_mw}, {16 * rt}")
            a(f"s_mul_i32 s{s_t0}, s{s_t0}, {lda}")
            a(f"s_add_u32 s{s_t0}, s{s_t0}, {a_src[1] + kstart[c] * 2}")
            for ks in range(chunks[c]):
                a(f"buffer_load_dwordx4 {vr(A_reg(ring, ks, rt), 4)}, v5, s[{sSA}:{sSA + 3}], s{s_t0} offen offset:{ks * 64}")
                vm.issue(("A", c))

    def issue_B(c):
        buf = c % NB
        ksc = chunks[c]
        nper = ksc // 2
        a(f"s_mul_i32 s{s_t1}, s{s_w}, {ksc * 8}")
        a(f"s_add_u32 s{s_t0}, s{s_t1}, {kstart[c]}")
        a(f"s_mul_i32 s{s_t0}, s{s_t0}, {ldw}")
        a(f"s_lshl_b32 s{s_t2}, s{s_n0}, 1")
        a(f"s_add_u32 s{s_t0}, s{s_t0}, s{s_t2}")
        a(f"s_lshl_b32 s{s_t1}, s{s_t1}, 6")
        for P in range(NP):
            for i in range(nper):
                a(f"s_add_u32 s{s_t2}, s{s_t1}, {buf * BUFB + P * PSTR + i * 1024}")
                a(f"s_mov_b32 m0, s{s_t2}")
                a(f"s_add_u32 s40, s{s_t0}, {16 * i * ldw + 64 * P}")
                a(f"buffer_load_dwordx4 v6, s[{sSW}:{sSW + 3}], s40 offen lds")
                vm.issue(("B", c))

    def tr_reads(c, ks, s):
        buf = c % NB
        for ct in range(CT):
            pp = ct // 2
            hf = ct & 1
            off = buf * BUFB + pp * PSTR + ks * 2048
            base = tb[(hf, off >> 15)]
            o = off & 32767
            r = B_reg(s, ct)
            a(f"ds_read_b64_tr_b16 {vr(r, 2)}, v{base} offset:{o}")
            a(f"ds_read_b64_tr_b16 {vr(r + 2, 2)}, v{base} offset:{o + 256}")

    for c in range(max(NA, NB)):
        if c < C and c < NA:
            issue_A(c)
        if c < C and c < NB:
            issue_B(c)

    if epi[0] == "qkv":
        srd(a, sSO, 34, WS_QK + S * 1024 * 2, 0)
        srd(a, sSR, 34, WS_VT + 512 * S * 2, 0)
        a("v_lshlrev_b32 v12, 11, v3")
        a("v_lshl_add_u32 v12, v4, 3, v12")
        a("v_lshlrev_b32 v13, 12, v3")
        a("v_lshl_add_u32 v13, v4, 3, v13")
    elif epi[0] == "resid":
        rs_pair = {KA_X: 38, KA_WS: 34, KA_OUT: 36}
        srd(a, sSR, rs_pair[epi[1][0]], epi[1][1] + S * D * 2, 0)
        srd(a, sSO, rs_pair[epi[2][0]], epi[2][1] + S * D * 2, 0)
        a("v_lshlrev_b32 v12, 10, v3")
        a("v_lshl_add_u32 v12, v4, 3, v12")
        for rt in range(RT):
            a(f"s_add_u32 s{s_t0}, s{s_mw}, {16 * rt}")
            a(f"s_lshl_b32 s{s_t0}, s{s_t0}, 10")
            a(f"s_lshl_b32 s{s_t1}, s{s_nw}, 1")
            a(f"s_add_u32 s{s_t0}, s{s_t0}, s{s_t1}")
            a(f"s_add_u32 s{s_t0}, s{s_t0}, {epi[1][1]}")
            for ct in range(CT):
                a(f"buffer_load_dwordx2 {vr(vR + (rt * CT + ct) * 2, 2)}, v12, s[{sSR}:{sSR + 3}], s{s_t0} offen offset:{32 * ct}")
                vm.issue("R")
    elif epi[0] == "relu":
        srd(a, sSO, 34, WS_H1 + S * DFF * 2, 0)
        a(f"s_mov_b32 s{s_t0}, {DFF * 2}")
        a(f"v_mul_lo_u32 v12, v3, s{s_t0}")
        a("v_lshl_add_u32 v12, v4, 3, v12")

    for i in range(nC):
        a(f"v_mov_b32 v{vC + i}, 0")

    if ln:
        assert C == 1
        vm.wait([("A", 0)])
        a("s_mov_b32 s41, 0x3f803f80")
        a("v_mov_b32 v14, s41")
        tS = vB
        for rt in range(RT):
            for i in range(8):
                a(f"v_mov_b32 v{tS + i}, 0")
            for ks in range(chunks[0]):
                for j in range(4):
                    r = A_reg(0, ks, rt) + j
                    a(f"v_dot2_f32_bf16 v{tS + j}, v{r}, v14, v{tS + j}")
                    a(f"v_dot2_f32_bf16 v{tS + 4 + j}, v{r}, v{r}, v{tS + 4 + j}")
            a.nop(4)
            a(f"v_add_f32 v{tS}, v{tS}, v{tS + 1}")
            a(f"v_add_f32 v{tS + 2}, v{tS + 2}, v{tS + 3}")
            a(f"v_add_f32 v{tS + 4}, v{tS + 4}, v{tS + 5}")
            a(f"v_add_f32 v{tS + 6}, v{tS + 6}, v{tS + 7}")
            a(f"v_add_f32 v{tS}, v{tS}, v{tS + 2}")
            a(f"v_add_f32 v{tS + 1}, v{tS + 4}, v{tS + 6}")
            for sw in ("v_permlane16_swap_b32", "v_permlane32_swap_b32"):
                a(f"v_mov_b32 v{tS + 2}, v{tS}")
                a(f"v_mov_b32 v{tS + 3}, v{tS + 1}")
                a.nop(2)
                a(f"{sw} v{tS}, v{tS + 2}")
                a(f"{sw} v{tS + 1}, v{tS + 3}")
                a.nop(2)
                a(f"v_add_f32 v{tS}, v{tS}, v{tS + 2}")
                a(f"v_add_f32 v{tS + 1}, v{tS + 1}, v{tS + 3}")
            a(f"v_mul_f32 v{tS}, 0x3b000000, v{tS}")
            a(f"v_mul_f32 v{tS + 1}, 0x3b000000, v{tS + 1}")
            a(f"v_fma_f32 v{tS + 2}, -v{tS}, v{tS}, v{tS + 1}")
            a(f"v_max_f32 v{tS + 2}, 0, v{tS + 2}")
            a(f"v_cvt_pk_bf16_f32 v{tS + 3}, v{tS}, v{tS + 2}")
            a.nop(1)
            a(f"v_lshlrev_b32 v{tS}, 16, v{tS + 3}")
            a(f"v_and_b32 v{tS + 2}, 0xffff0000, v{tS + 3}")
            a(f"v_add_f32 v{tS + 2}, 0x3727c5ac, v{tS + 2}")
            a(f"v_cvt_pk_bf16_f32 v{tS + 3}, v{tS + 2}, v{tS + 2}")
            a.nop(1)
            a(f"v_lshlrev_b32 v{tS + 2}, 16, v{tS + 3}")
            a(f"v_sqrt_f32 v{tS + 2}, v{tS + 2}")
            a.nop(1)
            a(f"v_cvt_pk_bf16_f32 v{tS + 3}, v{tS + 2}, v{tS + 2}")
            a.nop(1)
            a(f"v_lshlrev_b32 v{tS + 2}, 16, v{tS + 3}")
            a(f"v_rcp_f32 v{tS + 4}, v{tS + 2}")
            a.nop(1)
            a(f"v_mul_f32 v{tS + 6}, v{tS}, v{tS + 4}")
            a(f"v_sub_f32 v{tS + 6}, 0, v{tS + 6}")
            i = 0
            for ks in range(chunks[0]):
                for j in range(4):
                    r = A_reg(0, ks, rt) + j
                    t = tS + 8 + 2 * (i % 8)
                    i += 1
                    a(f"v_lshlrev_b32 v{t}, 16, v{r}")
                    a(f"v_and_b32 v{t + 1}, 0xffff0000, v{r}")
                    a(f"v_pk_fma_f32 {vr(t, 2)}, {vr(t, 2)}, {vr(tS + 4, 2)}, {vr(tS + 6, 2)} op_sel_hi:[1,0,0]")
                    a(f"v_cvt_pk_bf16_f32 v{r}, v{t}, v{t + 1}")
        a.nop(2)

    def mainloop(orient):
        for c in range(C):
            vm.wait([("A", c), ("B", c)])
            a("s_barrier")
            if c >= 1 and c - 1 + NB < C:
                issue_B(c - 1 + NB)
            ring = c % NA
            tr_reads(c, 0, 0)
            for ks in range(chunks[c]):
                s = ks & 1
                a("s_waitcnt lgkmcnt(0)")
                nxt = ks + 1 < chunks[c]
                for ct in range(CT):
                    if nxt:
                        buf = c % NB
                        pp = ct // 2
                        hf = ct & 1
                        off = buf * BUFB + pp * PSTR + (ks + 1) * 2048
                        base = tb[(hf, off >> 15)]
                        o = off & 32767
                        r = B_reg(1 - s, ct)
                        a(f"ds_read_b64_tr_b16 {vr(r, 2)}, v{base} offset:{o}")
                        a(f"ds_read_b64_tr_b16 {vr(r + 2, 2)}, v{base} offset:{o + 256}")
                    for rt in range(RT):
                        cr = C_reg(rt, ct)
                        ar = A_reg(ring, ks, rt)
                        br = B_reg(s, ct)
                        if orient[ct] == "W":
                            a(f"v_mfma_f32_16x16x32_bf16 {vr(cr, 4)}, {vr(br, 4)}, {vr(ar, 4)}, {vr(cr, 4)}")
                        else:
                            a(f"v_mfma_f32_16x16x32_bf16 {vr(cr, 4)}, {vr(ar, 4)}, {vr(br, 4)}, {vr(cr, 4)}")
            if c + NA < C:
                issue_A(c + NA)
        a.nop(10)

    def epilogue(orient):
        t = vB
        if epi[0] == "qkv":
            for rt in range(RT):
                for ct in range(CT):
                    cr = C_reg(rt, ct)
                    tt = t + 2 * ((rt * CT + ct) % 8)
                    a(f"v_cvt_pk_bf16_f32 v{tt}, v{cr}, v{cr + 1}")
                    a(f"v_cvt_pk_bf16_f32 v{tt + 1}, v{cr + 2}, v{cr + 3}")
                    if orient[ct] == "W":
                        a(f"s_add_u32 s{s_t0}, s{s_mw}, {16 * rt}")
                        a(f"s_lshl_b32 s{s_t0}, s{s_t0}, 11")
                        a(f"s_lshl_b32 s{s_t1}, s{s_nw}, 1")
                        a(f"s_add_u32 s{s_t0}, s{s_t0}, s{s_t1}")
                        a(f"buffer_store_dwordx2 {vr(tt, 2)}, v12, s[{sSO}:{sSO + 3}], s{s_t0} offen offset:{32 * ct}")
                    else:
                        a(f"s_add_u32 s{s_t0}, s{s_nw}, {16 * ct - 1024}")
                        a(f"s_lshl_b32 s{s_t0}, s{s_t0}, 12")
                        a(f"s_add_u32 s{s_t1}, s{s_mw}, {16 * rt}")
                        a(f"s_lshl_b32 s{s_t1}, s{s_t1}, 1")
                        a(f"s_add_u32 s{s_t0}, s{s_t0}, s{s_t1}")
                        a(f"s_add_u32 s{s_t0}, s{s_t0}, {WS_VT}")
                        a(f"buffer_store_dwordx2 {vr(tt, 2)}, v13, s[{sSR}:{sSR + 3}], s{s_t0} offen")
        elif epi[0] == "resid":
            vm.wait(["R"])
            for rt in range(RT):
                a(f"s_add_u32 s{s_t0}, s{s_mw}, {16 * rt}")
                a(f"s_lshl_b32 s{s_t0}, s{s_t0}, 10")
                a(f"s_lshl_b32 s{s_t1}, s{s_nw}, 1")
                a(f"s_add_u32 s{s_t0}, s{s_t0}, s{s_t1}")
                a(f"s_add_u32 s{s_t0}, s{s_t0}, {epi[2][1]}")
                for ct in range(CT):
                    cr = C_reg(rt, ct)
                    rr = vR + (rt * CT + ct) * 2
                    tt = t + 4 * ((rt * CT + ct) % 4)
                    a(f"v_cvt_pk_bf16_f32 v{tt}, v{cr}, v{cr + 1}")
                    a(f"v_cvt_pk_bf16_f32 v{tt + 1}, v{cr + 2}, v{cr + 3}")
                    a.nop(1)
                    a(f"v_lshlrev_b32 v{cr}, 16, v{tt}")
                    a(f"v_and_b32 v{cr + 1}, 0xffff0000, v{tt}")
                    a(f"v_lshlrev_b32 v{cr + 2}, 16, v{tt + 1}")
                    a(f"v_and_b32 v{cr + 3}, 0xffff0000, v{tt + 1}")
                    a(f"v_lshlrev_b32 v{tt + 2}, 16, v{rr}")
                    a(f"v_and_b32 v{tt + 3}, 0xffff0000, v{rr}")
                    a(f"v_add_f32 v{cr}, v{cr}, v{tt + 2}")
                    a(f"v_add_f32 v{cr + 1}, v{cr + 1}, v{tt + 3}")
                    a(f"v_lshlrev_b32 v{tt + 2}, 16, v{rr + 1}")
                    a(f"v_and_b32 v{tt + 3}, 0xffff0000, v{rr + 1}")
                    a(f"v_add_f32 v{cr + 2}, v{cr + 2}, v{tt + 2}")
                    a(f"v_add_f32 v{cr + 3}, v{cr + 3}, v{tt + 3}")
                    a(f"v_cvt_pk_bf16_f32 v{tt}, v{cr}, v{cr + 1}")
                    a(f"v_cvt_pk_bf16_f32 v{tt + 1}, v{cr + 2}, v{cr + 3}")
                    a(f"buffer_store_dwordx2 {vr(tt, 2)}, v12, s[{sSO}:{sSO + 3}], s{s_t0} offen offset:{32 * ct}")
        elif epi[0] == "relu":
            for ct in range(CT):
                a(f"s_add_u32 s{s_t2}, s{s_nw}, {16 * ct}")
                a(f"s_cmp_ge_u32 s{s_t2}, {N}")
                a(f"s_cbranch_scc1 {name}_skip{ct}")
                for rt in range(RT):
                    cr = C_reg(rt, ct)
                    tt = t + 2 * ((rt * CT + ct) % 8)
                    for i in range(4):
                        a(f"v_max_f32 v{cr + i}, 0, v{cr + i}")
                    a(f"v_cvt_pk_bf16_f32 v{tt}, v{cr}, v{cr + 1}")
                    a(f"v_cvt_pk_bf16_f32 v{tt + 1}, v{cr + 2}, v{cr + 3}")
                    a(f"s_add_u32 s{s_t0}, s{s_mw}, {16 * rt}")
                    a(f"s_mul_i32 s{s_t0}, s{s_t0}, {DFF * 2}")
                    a(f"s_lshl_b32 s{s_t1}, s{s_nw}, 1")
                    a(f"s_add_u32 s{s_t0}, s{s_t0}, s{s_t1}")
                    a(f"s_add_u32 s{s_t0}, s{s_t0}, {WS_H1}")
                    a(f"buffer_store_dwordx2 {vr(tt, 2)}, v12, s[{sSO}:{sSO + 3}], s{s_t0} offen offset:{32 * ct}")
                a.label(f"{name}_skip{ct}")

    if epi[0] == "qkv":
        variants = {}
        for tn in range(tiles_n):
            o = tuple("W" if (tn * BN + 16 * ct) < 1024 else "X" for ct in range(CT))
            variants.setdefault(o, []).append(tn)
        keys = list(variants.keys())
        saved = list(vm.q)
        for vi, o in enumerate(keys):
            last_tn = max(variants[o])
            if vi < len(keys) - 1:
                a(f"s_cmp_gt_u32 s{s_n0}, {last_tn * BN}")
                a(f"s_cbranch_scc1 {name}_var{vi + 1}")
            vm.q = list(saved)
            mainloop(o)
            epilogue(o)
            a("s_endpgm")
            if vi < len(keys) - 1:
                a.label(f"{name}_var{vi + 1}")
    else:
        o = tuple("W" for _ in range(CT))
        mainloop(o)
        epilogue(o)
    a.label(f"{name}_end")
    a("s_endpgm")
    return a.lines, descriptor(name, nvgpr, 48), lds_bytes


def attn_kernel(name):
    a = Asm()
    vm = VM(a)
    NT = 17
    vS = 24
    vK = vS + 4 * NT
    vV = vK + 2 * NT + 2
    vEnd = vV + 2 * NT + 2
    s_w, s_q0, s_h, s_t0, s_t1 = 24, 25, 26, 27, 28
    header(a, name)
    a("s_cmp_ge_u32 s2, 1024")
    a(f"s_cbranch_scc1 {name}_end")
    a(f"s_load_dwordx2 s[4:5], s[0:1], {KA_WS}")
    a("v_lshrrev_b32 v1, 6, v0")
    a("v_and_b32 v2, 63, v0")
    a.nop(1)
    a(f"v_readfirstlane_b32 s{s_w}, v1")
    a("v_and_b32 v3, 15, v2")
    a("v_lshrrev_b32 v4, 4, v2")
    a(f"s_lshr_b32 s{s_q0}, s2, 3")
    a(f"s_lshl_b32 s{s_q0}, s{s_q0}, 4")
    a(f"s_and_b32 s{s_h}, s2, 7")
    a(f"s_lshl_b32 s{s_h}, s{s_h}, 2")
    a.nop(2)
    a(f"s_add_u32 s{s_h}, s{s_h}, s{s_w}")
    a("s_waitcnt lgkmcnt(0)")
    srd(a, 8, 4, WS_QK + S * 2048, 0)
    srd(a, 12, 4, WS_VT + 512 * 4096, 0)
    srd(a, 16, 4, WS_O + S * 1024, 0)
    a("v_lshlrev_b32 v5, 11, v3")
    a("v_lshl_add_u32 v5, v4, 3, v5")
    a("v_lshlrev_b32 v6, 12, v3")
    a("v_lshl_add_u32 v6, v4, 3, v6")
    a(f"s_lshl_b32 s{s_t0}, s{s_q0}, 11")
    a(f"s_lshl_b32 s{s_t1}, s{s_h}, 5")
    a(f"s_add_u32 s{s_t0}, s{s_t0}, s{s_t1}")
    a(f"buffer_load_dwordx2 v[8:9], v5, s[8:11], s{s_t0} offen")
    vm.issue("Q")
    a("v_lshlrev_b32 v7, 2, v4")
    a("s_mov_b32 s30, 0xf149f2ca")
    a("v_mov_b32 v10, s30")
    for r in range(4):
        a(f"v_add_u32 v11, {r}, v7")
        a("v_cmp_le_u32 vcc, v11, v3")
        a.nop(2)
        a(f"v_cndmask_b32 v{12 + r}, v10, 0, vcc")
        a(f"v_cndmask_b32 v{16 + r}, 0, v10, vcc")
    for r in range(4):
        a(f"v_mov_b32 v{20 + r}, 0")

    def body(edge):
        sfx = "e" if edge else "f"
        if edge:
            pass
        for t in range(NT):
            a(f"s_add_i32 s{s_t0}, s{s_q0}, {16 * t - 256}")
            if edge:
                a(f"s_max_i32 s{s_t0}, s{s_t0}, 0")
            a(f"s_lshl_b32 s{s_t0}, s{s_t0}, 11")
            a(f"s_add_u32 s{s_t0}, s{s_t0}, s{s_t1}")
            a(f"s_add_u32 s{s_t0}, s{s_t0}, 1024")
            a(f"buffer_load_dwordx2 {vr(vK + 2 * t, 2)}, v5, s[8:11], s{s_t0} offen")
            vm.issue(("K", t))
        a(f"s_lshl_b32 s29, s{s_h}, 16")
        a(f"s_add_u32 s29, s29, {WS_VT}")
        for t in range(NT):
            a(f"s_add_i32 s{s_t0}, s{s_q0}, {16 * t - 256}")
            if edge:
                a(f"s_max_i32 s{s_t0}, s{s_t0}, 0")
            a(f"s_lshl_b32 s{s_t0}, s{s_t0}, 1")
            a(f"s_add_u32 s{s_t0}, s{s_t0}, s29")
            a(f"buffer_load_dwordx2 {vr(vV + 2 * t, 2)}, v6, s[12:15], s{s_t0} offen")
            vm.issue(("V", t))
        vm.wait(["Q"])
        for t in range(NT - 1, -1, -1):
            vm.wait([("K", t)]) if t == NT - 1 else None
            if t == NT - 1:
                cb = 12
            elif t == 0:
                cb = 16
            else:
                cb = 20
            if edge and t < NT - 1:
                a(f"s_cmp_ge_i32 s{s_q0}, {256 - 16 * t}")
                a(f"s_cbranch_scc1 {name}_{sfx}ok{t}")
                a.nop(3)
                for r in range(4):
                    a(f"v_mov_b32 v{20 + r}, v10")
                    a(f"v_mov_b32 v{16 + r}, v10")
                a.nop(2)
                a.label(f"{name}_{sfx}ok{t}")
            a(f"v_mfma_f32_16x16x16_bf16 {vr(vS + 4 * t, 4)}, {vr(vK + 2 * t, 2)}, v[8:9], {vr(cb, 4)}")
        a.nop(8)
        a(f"v_max3_f32 v12, v{vS}, v{vS + 1}, v{vS + 2}")
        a(f"v_max3_f32 v13, v{vS + 3}, v{vS + 4}, v{vS + 5}")
        i = 6
        k = 0
        while i + 1 < 4 * NT:
            a(f"v_max3_f32 v{12 + (k & 1)}, v{12 + (k & 1)}, v{vS + i}, v{vS + i + 1}")
            i += 2
            k += 1
        a("v_max_f32 v12, v12, v13")
        for sw in ("v_permlane16_swap_b32", "v_permlane32_swap_b32"):
            a("v_mov_b32 v13, v12")
            a.nop(2)
            a(f"{sw} v12, v13")
            a.nop(2)
            a("v_max_f32 v12, v12, v13")
        a("s_mov_b32 s31, 0x3eb8aa3b")
        a("v_mul_f32 v13, s31, v12")
        a("v_sub_f32 v13, 0, v13")
        a("v_mov_b32 v14, s31")
        for i in range(4 * NT):
            a(f"v_fma_f32 v{vS + i}, v{vS + i}, v14, v13")
        for i in range(4 * NT):
            a(f"v_exp_f32 v{vS + i}, v{vS + i}")
        a.nop(1)
        for t in range(NT):
            a(f"v_cvt_pk_bf16_f32 v{vK + 2 * t}, v{vS + 4 * t}, v{vS + 4 * t + 1}")
            a(f"v_cvt_pk_bf16_f32 v{vK + 2 * t + 1}, v{vS + 4 * t + 2}, v{vS + 4 * t + 3}")
        a("s_mov_b32 s31, 0x3f803f80")
        for r in range(4):
            a(f"v_mov_b32 v{12 + r}, s31")
            a(f"v_mov_b32 v{16 + r}, 0")
            a(f"v_mov_b32 v{20 + r}, 0")
        vm.wait_all()
        a.nop(2)
        for p in range(8):
            a(f"v_mfma_f32_16x16x32_bf16 v[16:19], {vr(vV + 4 * p, 4)}, {vr(vK + 4 * p, 4)}, v[16:19]")
            a(f"v_mfma_f32_16x16x32_bf16 v[20:23], v[12:15], {vr(vK + 4 * p, 4)}, v[20:23]")
        a.nop(4)
        a(f"v_mfma_f32_16x16x16_bf16 v[16:19], {vr(vV + 32, 2)}, {vr(vK + 32, 2)}, v[16:19]")
        a(f"v_mfma_f32_16x16x16_bf16 v[20:23], v[12:13], {vr(vK + 32, 2)}, v[20:23]")
        a.nop(10)
        a("v_rcp_f32 v20, v20")
        a.nop(1)
        for r in range(4):
            a(f"v_mul_f32 v{16 + r}, v{16 + r}, v20")
        a("v_cvt_pk_bf16_f32 v12, v16, v17")
        a("v_cvt_pk_bf16_f32 v13, v18, v19")
        a("v_lshlrev_b32 v5, 10, v3")
        a("v_lshl_add_u32 v5, v4, 3, v5")
        a(f"s_lshl_b32 s{s_t0}, s{s_q0}, 10")
        a(f"s_add_u32 s{s_t0}, s{s_t0}, s{s_t1}")
        a(f"s_add_u32 s{s_t0}, s{s_t0}, {WS_O}")
        a(f"buffer_store_dwordx2 v[12:13], v5, s[16:19], s{s_t0} offen")
        a("s_endpgm")

    saved = list(vm.q)
    a(f"s_cmp_lt_u32 s{s_q0}, 256")
    a(f"s_cbranch_scc1 {name}_edge")
    body(False)
    a.label(f"{name}_edge")
    vm.q = list(saved)
    body(True)
    a.label(f"{name}_end")
    a("s_endpgm")
    return a.lines, descriptor(name, vEnd, 48), 0


def main():
    kernels = []
    kernels.append(("k1_qkv_kernel", 256, gemm_kernel(
        "k1_qkv_kernel", a_src=(KA_X, 0), lda=1024, a_bytes=S * 1024, w_ka=KA_WQKV, ldw=3072,
        w_bytes=512 * 3072, N=1536, chunks=[16], BM=128, BN=96, WGM=4, WGN=1, NB=1, NA=1, ln=True,
        epi=("qkv",), tiles_n=16, ntiles=256)))
    kernels.append(("k2_attn_kernel", 1024, attn_kernel("k2_attn_kernel")))
    kernels.append(("k3_wo_kernel", 256, gemm_kernel(
        "k3_wo_kernel", a_src=(KA_WS, WS_O), lda=1024, a_bytes=S * 1024, w_ka=KA_WO, ldw=1024,
        w_bytes=512 * 1024, N=512, chunks=[8, 8], BM=64, BN=64, WGM=2, WGN=2, NB=2, NA=2, ln=False,
        epi=("resid", (KA_X, 0), (KA_WS, WS_H)), tiles_n=8, ntiles=256)))
    kernels.append(("k4_w1_kernel", 240, gemm_kernel(
        "k4_w1_kernel", a_src=(KA_WS, WS_H), lda=1024, a_bytes=S * 1024, w_ka=KA_W1, ldw=DFF * 2,
        w_bytes=512 * DFF * 2, N=DFF, chunks=[16], BM=128, BN=96, WGM=4, WGN=1, NB=1, NA=1, ln=True,
        epi=("relu",), tiles_n=15, ntiles=240)))
    kernels.append(("k5_w2_kernel", 256, gemm_kernel(
        "k5_w2_kernel", a_src=(KA_WS, WS_H1), lda=DFF * 2, a_bytes=S * DFF * 2, w_ka=KA_W2, ldw=1024,
        w_bytes=DFF * 1024, N=512, chunks=[8, 8, 8, 8, 8, 4], BM=64, BN=64, WGM=2, WGN=2, NB=3, NA=2,
        ln=False, epi=("resid", (KA_WS, WS_H), (KA_OUT, 0)), tiles_n=8, ntiles=256)))

    out = []
    out.append("; preLN -> sliding-window attention -> residual -> preLN -> ReLU FFN -> residual (generated by gen.py)")
    out.append("; kernarg: 0 A_x, 8 A_wqkv, 16 A_wo, 24 B_x, 32 B_w1, 40 B_w2, 48 d_out, 56 d_debug, 64 d_ws")
    for name, grid, (lines, desc, lds) in kernels:
        out.append(f"; @launch kernel={name} grid=({grid},1,1) block=(256,1,1) lds={lds}")
    out.append('.amdgcn_target "amdgcn-amd-amdhsa--gfx950"')
    out.append(".text")
    for name, grid, (lines, desc, lds) in kernels:
        out.extend(lines)
    out.append('.section .rodata,"a"')
    for name, grid, (lines, desc, lds) in kernels:
        out.append(".p2align 6")
        out.append(desc)
    path = sys.argv[1] if len(sys.argv) > 1 else \
        "sequential_preLN__sliding_block__dense_activation_relu__prompt.s"
    open(path, "w").write("\n".join(out) + "\n")


if __name__ == "__main__":
    main()
```

```python
import gen
from gen import Asm, VM, srd, header, descriptor, vr, S, WS_QK, WS_VT, WS_O, KA_WS, stamp


def attn3(name):
    a = Asm()
    vm = VM(a)
    NT = 17
    NKEY = 320
    L_K = 0
    L_V = NKEY * 128
    L_Q = L_V + 64 * 640
    lds_bytes = L_Q + 64 * 128
    vS = 32
    vF = vS + 4 * NT
    vEnd = vF + 18
    s_w, s_q0, s_hg, s_t0, s_t1, s_t2, s_kb, s_qt, s_h = 24, 25, 26, 27, 28, 29, 30, 31, 32
    header(a, name)
    a("s_cmp_ge_u32 s2, 256")
    a(f"s_cbranch_scc1 {name}_end")
    a(f"s_load_dwordx2 s[4:5], s[0:1], {KA_WS}")
    a("v_lshrrev_b32 v1, 6, v0")
    a("v_and_b32 v2, 63, v0")
    a(f"s_and_b32 s{s_q0}, s2, 7")
    a(f"v_readfirstlane_b32 s{s_w}, v1")
    a("v_and_b32 v3, 15, v2")
    a("v_lshrrev_b32 v4, 4, v2")
    a(f"s_lshl_b32 s{s_q0}, s{s_q0}, 2")
    a(f"s_lshr_b32 s{s_t0}, s2, 6")
    a(f"s_add_u32 s{s_q0}, s{s_q0}, s{s_t0}")
    a(f"s_lshl_b32 s{s_q0}, s{s_q0}, 6")
    a(f"s_bfe_u32 s{s_hg}, s2, 0x30003")
    a(f"s_sub_i32 s{s_kb}, s{s_q0}, 256")
    a("s_waitcnt lgkmcnt(0)")
    srd(a, 8, 4, WS_QK + S * 2048, 0)
    srd(a, 12, 4, WS_VT + 512 * 4096, 0)
    srd(a, 16, 4, WS_O + S * 1024, 0)
    if gen.STAMPS:
        a("s_mov_b32 s34, s4")
        a("s_mov_b32 s35, s5")
    stamp(a, vm, 0, vb=124)
    a(f"s_cmp_ge_u32 s{s_w}, 8")
    a(f"s_cbranch_scc1 {name}_ldv")
    a("v_lshrrev_b32 v5, 3, v2")
    a("v_and_b32 v6, 7, v2")
    a(f"s_mul_i32 s{s_t0}, s{s_w}, 40")
    a(f"s_lshl_b32 s{s_t1}, s{s_hg}, 7")
    a(f"s_add_u32 s40, s{s_t1}, 1024")
    a(f"s_lshl_b32 s{s_t2}, s{s_t0}, 7")
    a(f"v_add_u32 v7, s{s_t0}, v5")
    for i in range(5):
        a(f"v_add_u32 v9, {8 * i}, v7")
        a("v_bfe_u32 v8, v9, 1, 3")
        a("v_xor_b32 v8, v8, v6")
        a(f"v_add_u32 v9, s{s_kb}, v9")
        a("v_max_i32 v9, 0, v9")
        a("v_lshlrev_b32 v9, 11, v9")
        a(f"s_add_u32 m0, s{s_t2}, {L_K + i * 1024}")
        a("v_lshl_add_u32 v9, v8, 4, v9")
        a("buffer_load_dwordx4 v9, s[8:11], s40 offen lds")
    a(f"s_lshl_b32 s{s_t0}, s{s_w}, 3")
    a(f"v_add_u32 v7, s{s_t0}, v5")
    a("v_bfe_u32 v8, v7, 1, 3")
    a("v_xor_b32 v8, v8, v6")
    a(f"v_add_u32 v7, s{s_q0}, v7")
    a("v_lshlrev_b32 v7, 11, v7")
    a(f"s_lshl_b32 s{s_t2}, s{s_w}, 10")
    a(f"s_add_u32 m0, s{s_t2}, {L_Q}")
    a("v_lshl_add_u32 v7, v8, 4, v7")
    a(f"buffer_load_dwordx4 v7, s[8:11], s{s_t1} offen lds")
    a(f"s_branch {name}_ldone")
    a.label(f"{name}_ldv")
    a(f"s_lshl_b32 s{s_t1}, s{s_hg}, 18")
    a(f"s_add_u32 s{s_t1}, s{s_t1}, {WS_VT}")
    a(f"s_sub_u32 s{s_t0}, s{s_w}, 8")
    a(f"s_mul_i32 s{s_t0}, s{s_t0}, 320")
    a("s_mov_b32 s41, 1639")
    a(f"s_lshl_b32 s{s_t2}, s{s_t0}, 4")
    a(f"v_add_u32 v5, s{s_t0}, v2")
    for i in range(5):
        a(f"v_add_u32 v7, {64 * i}, v5")
        a("v_mul_lo_u32 v8, v7, s41")
        a("v_lshrrev_b32 v8, 16, v8")
        a("v_mul_u32_u24 v9, 40, v8")
        a("v_sub_u32 v9, v7, v9")
        a("v_bfe_u32 v10, v8, 1, 3")
        a("v_xor_b32 v9, v9, v10")
        a("v_lshlrev_b32 v9, 3, v9")
        a(f"v_add_u32 v9, s{s_kb}, v9")
        a("v_max_i32 v9, 0, v9")
        a("v_lshlrev_b32 v9, 1, v9")
        a(f"s_add_u32 m0, s{s_t2}, {L_V + i * 1024}")
        a("v_lshl_add_u32 v9, v8, 12, v9")
        a(f"buffer_load_dwordx4 v9, s[12:15], s{s_t1} offen lds")
    a.label(f"{name}_ldone")
    a("v_lshlrev_b32 v7, 2, v4")
    a("s_mov_b32 s42, 0xf149f2ca")
    a("v_mov_b32 v10, s42")
    for r in range(4):
        a(f"v_add_u32 v11, {r}, v7")
        a("v_cmp_le_u32 vcc, v11, v3")
        a(f"v_mov_b32 v{20 + r}, 0")
        a.nop(1)
        a(f"v_cndmask_b32 v{12 + r}, v10, 0, vcc")
        a(f"v_cndmask_b32 v{16 + r}, 0, v10, vcc")
    a("v_lshlrev_b32 v31, 10, v3")
    a("v_lshl_add_u32 v31, v4, 3, v31")
    a(f"s_and_b32 s{s_h}, s{s_w}, 3")
    a(f"s_lshr_b32 s{s_qt}, s{s_w}, 2")
    a(f"s_lshl_b32 s{s_t0}, s{s_h}, 1")
    a("v_lshrrev_b32 v11, 1, v4")
    a(f"v_add_u32 v7, s{s_t0}, v11")
    a("v_lshrrev_b32 v8, 1, v3")
    a("v_xor_b32 v7, v7, v8")
    a("v_lshlrev_b32 v7, 4, v7")
    a("v_lshl_add_u32 v7, v3, 7, v7")
    a("v_and_b32 v9, 1, v4")
    a("v_lshl_add_u32 v7, v9, 3, v7")
    a(f"s_lshl_b32 s{s_t0}, s{s_qt}, 11")
    a(f"v_add_u32 v28, s{s_t0}, v7")
    a(f"v_add_u32 v29, {L_Q}, v28")
    a(f"s_mul_i32 s{s_t0}, s{s_h}, {16 * 640}")
    a(f"s_add_u32 s{s_t0}, s{s_t0}, {L_V}")
    a("v_mul_u32_u24 v30, 640, v3")
    a(f"v_add_u32 v30, s{s_t0}, v30")
    a("v_lshl_add_u32 v30, v9, 3, v30")
    a(f"s_lshl_b32 s{s_t0}, s{s_qt}, 1")
    a(f"v_add_u32 v11, s{s_t0}, v11")
    a(f"s_lshl_b32 s{s_t1}, s{s_qt}, 4")
    a(f"s_add_i32 s{s_t1}, s{s_t1}, s{s_kb}")
    stamp(a, vm, 1, vb=124)
    a("s_waitcnt vmcnt(0)")
    a("s_barrier")
    stamp(a, vm, 3, vb=124)

    def body(edge):
        sfx = "e" if edge else "f"
        a("ds_read_b64 v[24:25], v29")
        batches = [list(range(16, 7, -1)), list(range(7, -1, -1))]
        for bi, tl in enumerate(batches):
            if bi:
                a.nop(2)
            for j, t in enumerate(tl):
                a(f"ds_read_b64 {vr(vF + 2 * j, 2)}, v28 offset:{t * 2048}")
            a("s_waitcnt lgkmcnt(0)")
            for j, t in enumerate(tl):
                cb = 12 if t == NT - 1 else (16 if t == 0 else 20)
                if edge and t < NT - 1:
                    a(f"s_add_i32 s{s_t0}, s{s_t1}, {16 * t}")
                    a(f"s_cmp_ge_i32 s{s_t0}, 0")
                    a(f"s_cbranch_scc1 {name}_{sfx}ok{t}")
                    a.nop(3)
                    for r in range(4):
                        a(f"v_mov_b32 v{20 + r}, v10")
                        a(f"v_mov_b32 v{16 + r}, v10")
                    a.nop(2)
                    a.label(f"{name}_{sfx}ok{t}")
                a(f"v_mfma_f32_16x16x16_bf16 {vr(vS + 4 * t, 4)}, {vr(vF + 2 * j, 2)}, v[24:25], {vr(cb, 4)}")
        stamp(a, vm, 4, vb=124)
        a.nop(2)
        for t in range(9):
            a(f"v_add_u32 v9, {2 * t}, v11")
            a("v_xor_b32 v9, v9, v8")
            a("v_lshl_add_u32 v9, v9, 4, v30")
            a(f"ds_read_b64 {vr(vF + 2 * t, 2)}, v9")
        order = list(range(16, -1, -1))
        regs = [vS + 4 * t + i for t in order for i in range(4)]
        a(f"v_max3_f32 v26, v{regs[0]}, v{regs[1]}, v{regs[2]}")
        a(f"v_max3_f32 v27, v{regs[3]}, v{regs[4]}, v{regs[5]}")
        i = 6
        k = 0
        while i + 1 < len(regs):
            a(f"v_max3_f32 v{26 + (k & 1)}, v{26 + (k & 1)}, v{regs[i]}, v{regs[i + 1]}")
            i += 2
            k += 1
        a("v_max_f32 v26, v26, v27")
        for sw in ("v_permlane16_swap_b32", "v_permlane32_swap_b32"):
            a("v_mov_b32 v27, v26")
            a.nop(2)
            a(f"{sw} v26, v27")
            a.nop(2)
            a("v_max_f32 v26, v26, v27")
        stamp(a, vm, 5, vb=124)
        a("s_mov_b32 s41, 0x3eb8aa3b")
        a("v_mul_f32 v24, s41, v26")
        a("v_sub_f32 v24, 0, v24")
        a("v_mov_b32 v26, s41")
        for t in range(NT):
            b = vS + 4 * t
            a(f"v_pk_fma_f32 {vr(b, 2)}, {vr(b, 2)}, v[26:27], v[24:25] op_sel_hi:[1,0,0]")
            a(f"v_pk_fma_f32 {vr(b + 2, 2)}, {vr(b + 2, 2)}, v[26:27], v[24:25] op_sel_hi:[1,0,0]")
            for i in range(4):
                a(f"v_exp_f32 v{b + i}, v{b + i}")
            if t > 0:
                p = t - 1
                a(f"v_cvt_pk_bf16_f32 v{vS + 2 * p}, v{vS + 4 * p}, v{vS + 4 * p + 1}")
                a(f"v_cvt_pk_bf16_f32 v{vS + 2 * p + 1}, v{vS + 4 * p + 2}, v{vS + 4 * p + 3}")
        a.nop(1)
        p = NT - 1
        a(f"v_cvt_pk_bf16_f32 v{vS + 2 * p}, v{vS + 4 * p}, v{vS + 4 * p + 1}")
        a(f"v_cvt_pk_bf16_f32 v{vS + 2 * p + 1}, v{vS + 4 * p + 2}, v{vS + 4 * p + 3}")
        stamp(a, vm, 6, vb=124)
        vG = vS + 36
        for t in range(9, NT):
            a(f"v_add_u32 v9, {2 * t}, v11")
            a("v_xor_b32 v9, v9, v8")
            a("v_lshl_add_u32 v9, v9, 4, v30")
            a(f"ds_read_b64 {vr(vG + 2 * (t - 8), 2)}, v9")
        a("s_mov_b32 s41, 0x3f803f80")
        for r in range(4):
            a(f"v_mov_b32 v{12 + r}, s41")
            a(f"v_mov_b32 v{16 + r}, 0")
            a(f"v_mov_b32 v{20 + r}, 0")
        a("s_waitcnt lgkmcnt(8)")
        a(f"v_mov_b32 v{vG}, v{vF + 16}")
        a(f"v_mov_b32 v{vG + 1}, v{vF + 17}")
        a.nop(2)
        for p in range(4):
            a(f"v_mfma_f32_16x16x32_bf16 v[16:19], {vr(vF + 4 * p, 4)}, {vr(vS + 4 * p, 4)}, v[16:19]")
            a(f"v_mfma_f32_16x16x32_bf16 v[20:23], v[12:15], {vr(vS + 4 * p, 4)}, v[20:23]")
        a("s_waitcnt lgkmcnt(0)")
        for p in range(4, 8):
            a(f"v_mfma_f32_16x16x32_bf16 v[16:19], {vr(vG + 4 * (p - 4), 4)}, {vr(vS + 4 * p, 4)}, v[16:19]")
            a(f"v_mfma_f32_16x16x32_bf16 v[20:23], v[12:15], {vr(vS + 4 * p, 4)}, v[20:23]")
        a.nop(4)
        a(f"v_mfma_f32_16x16x16_bf16 v[16:19], {vr(vG + 16, 2)}, {vr(vS + 32, 2)}, v[16:19]")
        a(f"v_mfma_f32_16x16x16_bf16 v[20:23], v[12:13], {vr(vS + 32, 2)}, v[20:23]")
        a(f"s_lshl_b32 s{s_t0}, s{s_qt}, 4")
        a(f"s_add_u32 s{s_t0}, s{s_t0}, s{s_q0}")
        a(f"s_lshl_b32 s{s_t0}, s{s_t0}, 10")
        a(f"s_lshl_b32 s{s_t1}, s{s_hg}, 2")
        a(f"s_add_u32 s{s_t1}, s{s_t1}, s{s_h}")
        a(f"s_lshl_b32 s{s_t1}, s{s_t1}, 5")
        a(f"s_add_u32 s{s_t0}, s{s_t0}, s{s_t1}")
        a(f"s_add_u32 s{s_t0}, s{s_t0}, {WS_O}")
        a.nop(4)
        a("v_rcp_f32 v20, v20")
        a.nop(1)
        for r in range(4):
            a(f"v_mul_f32 v{16 + r}, v{16 + r}, v20")
        a("v_cvt_pk_bf16_f32 v12, v16, v17")
        a("v_cvt_pk_bf16_f32 v13, v18, v19")
        a(f"buffer_store_dwordx2 v[12:13], v31, s[16:19], s{s_t0} offen")
        stamp(a, vm, 7, vb=124)
        a("s_endpgm")

    a(f"s_cmp_lt_u32 s{s_q0}, 256")
    a(f"s_cbranch_scc1 {name}_edge")
    body(False)
    a.label(f"{name}_edge")
    body(True)
    a.label(f"{name}_end")
    a("s_endpgm")
    return a.lines, descriptor(name, 128 if gen.STAMPS else vEnd, 56), lds_bytes
```

```python
import gen
from gen import (Asm, VM, srd, header, descriptor, vr, S, D, DFF, WS_QK, WS_VT, WS_O, WS_H, WS_H1,
                 KA_X, KA_WS, KA_OUT, stamp)


def gemm5(name, *, a_src, lda, a_bytes, w_ka, ldw, w_bytes, N, nks, BM, BN, WGM, WGN, NB, ln, epi,
          tiles_n, ntiles, STG=1, dbg=()):
    a = Asm()
    KC, KS = 64, 2
    assert nks % KS == 0
    C = nks // KS
    assert NB <= C + 1
    RT = BM // WGM // 16
    CT = BN // WGN // 16
    NP = BN // 32
    RB = 128
    APART = BM * RB
    PSTR = KC * 64
    WPART = NP * PSTR
    BUFB = APART + WPART
    L_ST = 0
    RING = 1024
    lds_bytes = RING + NB * BUFB
    assert lds_bytes <= 160 * 1024, lds_bytes
    nAi = APART // 1024 // 4
    assert nAi <= 4
    nld = nAi + NP

    sSA, sSW, sSO, sSR = 8, 12, 16, 20
    s_w, s_m0, s_n0, s_t0, s_t1, s_t2, s_wm, s_wn, s_mw, s_nw = 24, 25, 26, 27, 28, 29, 30, 31, 32, 33
    s_a, s_b, s_lb, s_bi, s_cnt, s_rot = 42, 43, 44, 45, 46, 47

    header(a, name)
    a(f"s_cmp_ge_u32 s2, {ntiles}")
    a(f"s_cbranch_scc1 {name}_end")
    a(f"s_load_dwordx2 s[4:5], s[0:1], {a_src[0]}")
    a(f"s_load_dwordx2 s[6:7], s[0:1], {w_ka}")
    a(f"s_load_dwordx2 s[34:35], s[0:1], {KA_WS}")
    if epi[0] == "resid":
        a(f"s_load_dwordx2 s[36:37], s[0:1], {KA_OUT}")
        a(f"s_load_dwordx2 s[38:39], s[0:1], {KA_X}")
    a("v_lshrrev_b32 v1, 6, v0")
    a("v_and_b32 v2, 63, v0")
    per = (ntiles // tiles_n) // 8
    a(f"s_lshr_b32 s{s_t0}, s2, 3")
    if tiles_n & (tiles_n - 1) == 0:
        a(f"s_lshr_b32 s{s_t1}, s{s_t0}, {tiles_n.bit_length() - 1}")
        a(f"s_and_b32 s{s_t2}, s{s_t0}, {tiles_n - 1}")
    else:
        magic = (1 << 32) // tiles_n + 1
        a(f"s_mov_b32 s{s_t2}, {magic}")
        a(f"s_mul_hi_u32 s{s_t1}, s{s_t0}, s{s_t2}")
        a(f"s_mul_i32 s{s_t2}, s{s_t1}, {tiles_n}")
        a(f"s_sub_u32 s{s_t2}, s{s_t0}, s{s_t2}")
    a(f"s_and_b32 s{s_t0}, s2, 7")
    a(f"s_mul_i32 s{s_t0}, s{s_t0}, {per}")
    a(f"s_add_u32 s{s_t1}, s{s_t1}, s{s_t0}")
    a(f"v_readfirstlane_b32 s{s_w}, v1")
    a(f"s_mul_i32 s{s_m0}, s{s_t1}, {BM}")
    a(f"s_mul_i32 s{s_n0}, s{s_t2}, {BN}")
    a("v_and_b32 v3, 15, v2")
    a("v_lshrrev_b32 v4, 4, v2")
    a(f"s_cmp_ge_u32 s{s_w}, 4")
    a(f"s_cbranch_scc1 {name}_loader")

    vm = VM(a)
    if WGN == 1:
        a(f"s_mul_i32 s{s_mw}, s{s_w}, {16 * RT}")
        a(f"s_mul_i32 s{s_t0}, s{s_w}, {16 * RT * RB}")
        a(f"s_mov_b32 s{s_nw}, s{s_n0}")
        a(f"s_mov_b32 s{s_t1}, {RING}")
    else:
        a(f"s_lshr_b32 s{s_wm}, s{s_w}, 1")
        a(f"s_and_b32 s{s_wn}, s{s_w}, 1")
        a(f"s_mul_i32 s{s_mw}, s{s_wm}, {16 * RT}")
        a(f"s_mul_i32 s{s_t0}, s{s_wm}, {16 * RT * RB}")
        a(f"s_mul_i32 s{s_nw}, s{s_wn}, {16 * CT}")
        a(f"s_add_u32 s{s_nw}, s{s_nw}, s{s_n0}")
        a(f"s_mul_i32 s{s_t1}, s{s_wn}, {PSTR * (CT // 2)}")
        a(f"s_add_u32 s{s_t1}, s{s_t1}, {RING}")
    a(f"s_add_u32 s{s_mw}, s{s_mw}, s{s_m0}")
    a(f"s_add_u32 s{s_t0}, s{s_t0}, {RING}")
    a("v_and_b32 v8, 3, v2")
    a("v_bfe_u32 v9, v2, 2, 2")
    a("v_lshl_add_u32 v9, v4, 3, v9")
    a("v_lshlrev_b32 v9, 6, v9")
    a("v_lshl_add_u32 v9, v8, 3, v9")
    a(f"v_add_u32 v9, s{s_t1}, v9")
    a("v_and_b32 v10, 1, v4")
    a("v_lshlrev_b32 v10, 5, v10")
    a("v_xor_b32 v11, 32, v10")
    a("v_add_u32 v10, v9, v10")
    a("v_add_u32 v11, v9, v11")
    a("v_lshlrev_b32 v9, 7, v3")
    a(f"v_add_u32 v9, s{s_t0}, v9")
    a("v_lshrrev_b32 v8, 1, v3")
    a("v_xor_b32 v12, v4, v8")
    a("v_xor_b32 v13, 4, v12")
    a("v_lshl_add_u32 v12, v12, 4, v9")
    a("v_lshl_add_u32 v13, v13, 4, v9")

    vA = 16
    vB = vA + 2 * STG * RT * 4
    vC = vB + 2 * STG * CT * 4
    vCS = vC + RT * CT * 4
    nCS = CT * 4 if ln else 0
    vST = vCS + nCS
    nST = 8 * RT if ln else 0
    vON = vST + nST
    vRS = vON + (4 if ln else 0)
    rows = 16 * RT
    nvgpr = vRS + (16 if epi[0] == "resid" else 0)
    assert nvgpr <= 256

    def A_reg(s, rt, k=0):
        return vA + ((s * STG + k) * RT + rt) * 4

    def B_reg(s, ct, k=0):
        return vB + ((s * STG + k) * CT + ct) * 4

    def C_reg(rt, ct):
        return vC + (rt * CT + ct) * 4

    for i in range(RT * CT * 4 + nCS + nST):
        a(f"v_mov_b32 v{vC + i}, 0")
    if ln:
        a("s_mov_b32 s41, 0x3f803f80")
        for i in range(4):
            a(f"v_mov_b32 v{vON + i}, s41")
    a(f"s_mov_b32 s{s_bi}, 0")
    a(f"s_mov_b32 s{s_cnt}, {C // STG}")
    a(f"s_mov_b32 s40, {-(NB - 1) * BUFB}")
    a("s_waitcnt lgkmcnt(0)")
    stamp(a, vm, 0)
    if epi[0] == "qkv":
        srd(a, sSO, 34, WS_QK + S * 1024 * 2, 0)
        srd(a, sSR, 34, WS_VT + 512 * S * 2, 0)
    elif epi[0] == "resid":
        rs_pair = {KA_X: 38, KA_WS: 34, KA_OUT: 36}
        srd(a, sSR, rs_pair[epi[1][0]], epi[1][1] + S * D * 2, 0)
        srd(a, sSO, rs_pair[epi[2][0]], epi[2][1] + S * D * 2, 0)
        a("v_lshrrev_b32 v8, 2, v2")
        a("v_and_b32 v9, 3, v2")
        a("v_lshlrev_b32 v14, 10, v8")
        a("v_lshl_add_u32 v14, v9, 4, v14")
        a(f"s_lshl_b32 s{s_t0}, s{s_mw}, 10")
        a(f"s_lshl_b32 s{s_t1}, s{s_nw}, 1")
        a(f"s_add_u32 s{s_a}, s{s_t0}, s{s_t1}")
        a(f"s_add_u32 s{s_t0}, s{s_a}, {epi[1][1]}")
        a(f"s_add_u32 s{s_t1}, s{s_t0}, {16 * 1024}")
        a(f"buffer_load_dwordx4 {vr(vRS, 4)}, v14, s[{sSR}:{sSR + 3}], s{s_t0} offen")
        a(f"buffer_load_dwordx4 {vr(vRS + 4, 4)}, v14, s[{sSR}:{sSR + 3}], s{s_t1} offen")
    elif epi[0] == "relu":
        srd(a, sSO, 34, WS_H1 + S * DFF * 2, 0)

    def rd(ks0, s):
        ops = []
        for k in range(STG):
            ks = ks0 + k
            for rt in range(RT):
                ops.append(f"ds_read_b128 {vr(A_reg(s, rt, k), 4)}, v{12 + ks} offset:{16 * rt * RB}")
            for ct in range(CT):
                o = APART + (ct // 2) * PSTR + ks * 2048
                r = B_reg(s, ct, k)
                ops.append(f"ds_read_b64_tr_b16 {vr(r, 2)}, v{10 + (ct & 1)} offset:{o}")
                ops.append(f"ds_read_b64_tr_b16 {vr(r + 2, 2)}, v{10 + (ct & 1)} offset:{o + 256}")
        return ops

    def mm(d, x, y):
        return f"v_mfma_f32_16x16x32_bf16 {vr(d, 4)}, {vr(x, 4)}, {vr(y, 4)}, {vr(d, 4)}"

    def stage(orient, s, nxt):
        mf = []
        for k in range(STG):
            for ct in range(CT):
                br = B_reg(s, ct, k)
                for rt in range(RT):
                    cr, ar = C_reg(rt, ct), A_reg(s, rt, k)
                    mf.append(mm(cr, br, ar) if orient[ct] == "W" else mm(cr, ar, br))
                if ln:
                    cs = vCS + 4 * ct
                    mf.append(mm(cs, br, vON) if orient[ct] == "W" else mm(cs, vON, br))
                if ln and ct < RT:
                    ar = A_reg(s, ct, k)
                    mf.append(mm(vST + 8 * ct, vON, ar))
                    mf.append(mm(vST + 8 * ct + 4, ar, ar))
        nm = len(mf)
        for i, m in enumerate(mf):
            for op in nxt[i * len(nxt) // nm:(i + 1) * len(nxt) // nm]:
                a(op)
            a(m)

    def rotate():
        a(f"s_add_u32 s{s_bi}, s{s_bi}, 1")
        a(f"s_cmp_eq_u32 s{s_bi}, {NB}")
        a(f"s_cselect_b32 s{s_rot}, s40, {BUFB}")
        a(f"s_cselect_b32 s{s_bi}, 0, s{s_bi}")

    def compute(orient, tag):
        nW = sum(1 for o in orient if o == "W")
        nX = CT - nW
        a("s_barrier")
        stamp(a, vm, 1)
        for op in rd(0, 0):
            a(op)
        bi = 0
        for it in range(C // STG):
            for half in (0, 1):
                newchunk = STG == 2 or half == 1
                a("s_waitcnt lgkmcnt(0)")
                if newchunk:
                    a("s_barrier")
                    bi += 1
                    rot = BUFB
                    if bi == NB:
                        bi = 0
                        rot = -(NB - 1) * BUFB
                    for r in (10, 11, 12, 13):
                        a(f"v_add_u32 v{r}, {rot & 0xffffffff}, v{r}")
                stage(orient, half, rd(0 if newchunk else 1, 1 - half))
        a("s_waitcnt lgkmcnt(0)")
        a.nop(8)
        stamp(a, vm, 2)
        tS = vB
        if ln:
            a("v_lshlrev_b32 v8, 2, v4")
            a("v_sub_u32 v8, v3, v8")
            for rt in range(RT):
                q = vST + 8 * rt
                a(f"v_mov_b32 v{tS + 1}, 0")
                for r in range(4):
                    a(f"v_cmp_eq_u32 vcc, {r}, v8")
                    a.nop(2)
                    a(f"v_cndmask_b32 v{tS + 1}, v{tS + 1}, v{q + 4 + r}, vcc")
                for sw in ("v_permlane16_swap_b32", "v_permlane32_swap_b32"):
                    a(f"v_mov_b32 v{tS + 3}, v{tS + 1}")
                    a.nop(2)
                    a(f"{sw} v{tS + 1}, v{tS + 3}")
                    a.nop(2)
                    a(f"v_add_f32 v{tS + 1}, v{tS + 1}, v{tS + 3}")
                a(f"v_mov_b32 v{tS}, v{q}")
                a(f"v_mul_f32 v{tS}, 0x3b000000, v{tS}")
                a(f"v_mul_f32 v{tS + 1}, 0x3b000000, v{tS + 1}")
                a(f"v_fma_f32 v{tS + 2}, -v{tS}, v{tS}, v{tS + 1}")
                a(f"v_max_f32 v{tS + 2}, 0, v{tS + 2}")
                a(f"v_cvt_pk_bf16_f32 v{tS + 3}, v{tS}, v{tS + 2}")
                a.nop(1)
                a(f"v_lshlrev_b32 v{tS}, 16, v{tS + 3}")
                a(f"v_and_b32 v{tS + 2}, 0xffff0000, v{tS + 3}")
                a(f"v_add_f32 v{tS + 2}, 0x3727c5ac, v{tS + 2}")
                a(f"v_cvt_pk_bf16_f32 v{tS + 3}, v{tS + 2}, v{tS + 2}")
                a.nop(1)
                a(f"v_lshlrev_b32 v{tS + 2}, 16, v{tS + 3}")
                a(f"v_sqrt_f32 v{tS + 2}, v{tS + 2}")
                a.nop(1)
                a(f"v_cvt_pk_bf16_f32 v{tS + 3}, v{tS + 2}, v{tS + 2}")
                a.nop(1)
                a(f"v_lshlrev_b32 v{tS + 2}, 16, v{tS + 3}")
                a(f"v_rcp_f32 v{q}, v{tS + 2}")
                a.nop(1)
                a(f"v_mul_f32 v{q + 2}, -v{tS}, v{q}")
            if nX:
                a(f"s_lshl_b32 s{s_t0}, s{s_w}, 8")
                a("v_lshlrev_b32 v8, 2, v3")
                a(f"v_add_u32 v8, s{s_t0}, v8")
                for rt in range(RT):
                    q = vST + 8 * rt
                    a(f"ds_write_b32 v8, v{q} offset:{L_ST + 64 * rt}")
                    a(f"ds_write_b32 v8, v{q + 2} offset:{L_ST + 128 + 64 * rt}")
                a("v_lshlrev_b32 v8, 4, v4")
                a(f"v_add_u32 v8, s{s_t0}, v8")
                a("s_waitcnt lgkmcnt(0)")
                for rt in range(RT):
                    a(f"ds_read_b128 {vr(B_reg(1, 2 * rt), 4)}, v8 offset:{L_ST + 64 * rt}")
                    a(f"ds_read_b128 {vr(B_reg(1, 2 * rt + 1), 4)}, v8 offset:{L_ST + 128 + 64 * rt}")
                a("s_waitcnt lgkmcnt(0)")
            for rt in range(RT):
                q = vST + 8 * rt
                for ct in range(CT):
                    cr = C_reg(rt, ct)
                    cs = vCS + 4 * ct
                    for i in (0, 2):
                        if orient[ct] == "W":
                            a(f"v_pk_mul_f32 v[8:9], {vr(cs + i, 2)}, {vr(q + 2, 2)} op_sel_hi:[1,0]")
                            a(f"v_pk_fma_f32 {vr(cr + i, 2)}, {vr(cr + i, 2)}, {vr(q, 2)}, v[8:9] op_sel_hi:[1,0,1]")
                        else:
                            a(f"v_pk_mul_f32 v[8:9], {vr(B_reg(1, 2 * rt + 1) + i, 2)}, {vr(cs, 2)} op_sel_hi:[1,0]")
                            a(f"v_pk_fma_f32 {vr(cr + i, 2)}, {vr(cr + i, 2)}, {vr(B_reg(1, 2 * rt) + i, 2)}, v[8:9]")
        a(f"s_lshl_b32 s{s_t0}, s{s_w}, 13")
        a(f"s_add_u32 s{s_t0}, s{s_t0}, {RING}")
        if nW:
            a(f"v_mul_u32_u24 v10, {32 * nW}, v3")
            a("v_lshl_add_u32 v10, v4, 3, v10")
            a(f"v_add_u32 v10, s{s_t0}, v10")
        if nX:
            a(f"v_lshlrev_b32 v11, {(rows * 2).bit_length() - 1}, v3")
            a("v_lshl_add_u32 v11, v4, 3, v11")
            a(f"v_add_u32 v11, s{s_t0}, v11")
        jw = jx = 0
        for ct in range(CT):
            for rt in range(RT):
                cr = C_reg(rt, ct)
                if epi[0] == "relu":
                    for i in range(4):
                        a(f"v_max_f32 v{cr + i}, 0, v{cr + i}")
                a(f"v_cvt_pk_bf16_f32 v{cr}, v{cr}, v{cr + 1}")
                a(f"v_cvt_pk_bf16_f32 v{cr + 1}, v{cr + 2}, v{cr + 3}")
                if orient[ct] == "W":
                    a(f"ds_write_b64 v10, {vr(cr, 2)} offset:{16 * rt * 32 * nW + 32 * jw}")
                else:
                    a(f"ds_write_b64 v11, {vr(cr, 2)} offset:{rows * 32 * nW + 16 * jx * rows * 2 + 32 * rt}")
            if orient[ct] == "W":
                jw += 1
            else:
                jx += 1
        if epi[0] == "resid":
            a("v_lshlrev_b32 v8, 4, v2")
            a(f"v_add_u32 v8, s{s_t0}, v8")
            a("s_waitcnt lgkmcnt(0)")
            a(f"ds_read_b128 {vr(vC, 4)}, v8")
            a(f"ds_read_b128 {vr(vC + 4, 4)}, v8 offset:1024")
            a(f"s_add_u32 s{s_t0}, s{s_a}, {epi[2][1]}")
            a(f"s_add_u32 s{s_t1}, s{s_t0}, {16 * 1024}")
            a("s_waitcnt vmcnt(0) lgkmcnt(0)")
            for i in range(8):
                a(f"v_lshlrev_b32 v8, 16, v{vC + i}")
                a(f"v_and_b32 v9, 0xffff0000, v{vC + i}")
                a(f"v_lshlrev_b32 v10, 16, v{vRS + i}")
                a(f"v_and_b32 v11, 0xffff0000, v{vRS + i}")
                a("v_pk_add_f32 v[8:9], v[8:9], v[10:11]")
                a(f"v_cvt_pk_bf16_f32 v{vC + i}, v8, v9")
            a(f"buffer_store_dwordx4 {vr(vC, 4)}, v14, s[{sSO}:{sSO + 3}], s{s_t0} offen")
            a(f"buffer_store_dwordx4 {vr(vC + 4, 4)}, v14, s[{sSO}:{sSO + 3}], s{s_t1} offen")
        else:
            ldo = 2048 if epi[0] == "qkv" else DFF * 2
            if nW:
                cpr = 2 * nW
                rpi = 1 << ((64 // cpr).bit_length() - 1)
                act = rpi * cpr
                if cpr & (cpr - 1) == 0:
                    a(f"v_lshrrev_b32 v8, {cpr.bit_length() - 1}, v2")
                else:
                    assert cpr == 12
                    a("v_mul_u32_u24 v8, 5462, v2")
                    a("v_lshrrev_b32 v8, 16, v8")
                a(f"v_mul_u32_u24 v9, {cpr}, v8")
                a("v_sub_u32 v9, v2, v9")
                a("v_lshlrev_b32 v12, 4, v2")
                a(f"v_add_u32 v12, s{s_t0}, v12")
                a(f"s_mov_b32 s{s_t1}, {ldo}")
                a(f"v_mul_lo_u32 v13, v8, s{s_t1}")
                a("v_lshl_add_u32 v13, v9, 4, v13")
                if epi[0] == "relu":
                    a(f"v_lshl_add_u32 v9, v9, 3, s{s_nw}")
                    a(f"v_cmp_gt_u32 vcc, {N}, v9")
                    a("v_mov_b32 v9, 0x7fffffff")
                    a.nop(1)
                    a("v_cndmask_b32 v13, v9, v13, vcc")
                    a(f"s_mul_i32 s{s_t1}, s{s_mw}, {ldo}")
                    a(f"s_add_u32 s{s_t1}, s{s_t1}, {WS_H1}")
                else:
                    a(f"s_lshl_b32 s{s_t1}, s{s_mw}, 11")
                a(f"s_lshl_b32 s{s_t2}, s{s_nw}, 1")
                a(f"s_add_u32 s{s_t1}, s{s_t1}, s{s_t2}")
                if act < 64:
                    a(f"s_mov_b64 exec, {(1 << act) - 1}" if act <= 32 else f"s_mov_b32 exec_hi, {(1 << (act - 32)) - 1}")
                a("s_waitcnt lgkmcnt(0)")
                ninst = rows // rpi
                for i in range(ninst):
                    a(f"ds_read_b128 {vr(vC + 4 * i, 4)}, v12 offset:{i * act * 16}")
                for i in range(ninst):
                    a(f"s_waitcnt lgkmcnt({ninst - 1 - i})")
                    a(f"buffer_store_dwordx4 {vr(vC + 4 * i, 4)}, v13, s[{sSO}:{sSO + 3}], s{s_t1} offen")
                    if i + 1 < ninst:
                        a(f"s_add_u32 s{s_t1}, s{s_t1}, {rpi * ldo}")
                if act < 64:
                    a("s_mov_b64 exec, -1")
            if nX:
                a("v_lshrrev_b32 v8, 2, v2")
                a("v_and_b32 v9, 3, v2")
                a("v_lshlrev_b32 v13, 12, v8")
                a("v_lshl_add_u32 v13, v9, 4, v13")
                a("v_lshlrev_b32 v12, 4, v2")
                a(f"v_add_u32 v12, s{s_t0}, v12")
                a(f"s_add_u32 s{s_t1}, s{s_nw}, {16 * nW - 1024}")
                a(f"s_lshl_b32 s{s_t1}, s{s_t1}, 12")
                a(f"s_lshl_b32 s{s_t2}, s{s_mw}, 1")
                a(f"s_add_u32 s{s_t1}, s{s_t1}, s{s_t2}")
                a(f"s_add_u32 s{s_t1}, s{s_t1}, {WS_VT}")
                a("s_waitcnt lgkmcnt(0)")
                vX = vB
                for i in range(nX):
                    a(f"ds_read_b128 {vr(vX + 4 * i, 4)}, v12 offset:{rows * 32 * nW + i * 1024}")
                for i in range(nX):
                    a(f"s_waitcnt lgkmcnt({nX - 1 - i})")
                    a(f"buffer_store_dwordx4 {vr(vX + 4 * i, 4)}, v13, s[{sSR}:{sSR + 3}], s{s_t1} offen")
                    if i + 1 < nX:
                        a(f"s_add_u32 s{s_t1}, s{s_t1}, {16 * 4096}")
        stamp(a, vm, 4)
        a("s_endpgm")

    if epi[0] == "qkv":
        variants = {}
        for tn in range(tiles_n):
            o = tuple("W" if (tn * BN + 16 * ct) < 1024 else "X" for ct in range(CT))
            variants.setdefault(o, []).append(tn)
    else:
        variants = {tuple("W" for _ in range(CT)): list(range(tiles_n))}
    keys = list(variants.keys())
    for vi, o in enumerate(keys):
        if vi < len(keys) - 1:
            a(f"s_cmp_gt_u32 s{s_n0}, {max(variants[o]) * BN}")
            a(f"s_cbranch_scc1 {name}_var{vi + 1}")
        compute(o, vi)
        if vi < len(keys) - 1:
            a.label(f"{name}_var{vi + 1}")

    a.label(f"{name}_loader")
    a(f"s_sub_u32 s{s_w}, s{s_w}, 4")
    a("v_lshrrev_b32 v5, 3, v2")
    a("v_and_b32 v6, 7, v2")
    a(f"s_mov_b32 s{s_t0}, {lda}")
    a("v_lshrrev_b32 v8, 1, v5")
    a("v_xor_b32 v8, v8, v6")
    a(f"v_mul_lo_u32 v7, v5, s{s_t0}")
    for i in range(nAi):
        if i & 1:
            a("v_xor_b32 v9, 4, v8")
            a(f"v_lshl_add_u32 v{16 + i}, v9, 4, v7")
        else:
            a(f"v_lshl_add_u32 v{16 + i}, v8, 4, v7")
        if i:
            a(f"v_add_u32 v{16 + i}, {8 * i * lda - 1024 * i}, v{16 + i}")
    a("v_lshrrev_b32 v6, 2, v2")
    a(f"s_mov_b32 s{s_t0}, {ldw}")
    a(f"v_mul_lo_u32 v6, v6, s{s_t0}")
    a("v_lshrrev_b32 v9, 5, v2")
    a("v_lshlrev_b32 v9, 1, v9")
    a("v_and_b32 v8, 3, v2")
    a("v_xor_b32 v9, v9, v8")
    a("v_lshl_add_u32 v20, v9, 4, v6")
    for P in range(1, NP):
        a(f"v_add_u32 v{20 + P}, {64 * P}, v20")
    a(f"s_mul_i32 s{s_t1}, s{s_w}, {BM // 4}")
    a(f"s_add_u32 s{s_a}, s{s_t1}, s{s_m0}")
    a(f"s_mul_i32 s{s_a}, s{s_a}, {lda}")
    a(f"s_add_u32 s{s_a}, s{s_a}, {a_src[1]}")
    a(f"s_mul_i32 s{s_wm}, s{s_w}, {APART // 4}")
    a(f"s_add_u32 s{s_wm}, s{s_wm}, {RING}")
    a(f"s_mul_i32 s{s_b}, s{s_w}, {16 * ldw}")
    a(f"s_lshl_b32 s{s_t2}, s{s_n0}, 1")
    a(f"s_add_u32 s{s_b}, s{s_b}, s{s_t2}")
    a(f"s_lshl_b32 s{s_wn}, s{s_w}, 10")
    a(f"s_add_u32 s{s_wn}, s{s_wn}, {RING + APART}")
    a(f"s_mov_b32 s{s_lb}, 0")
    a(f"s_mov_b32 s{s_bi}, 0")
    a("s_waitcnt lgkmcnt(0)")
    srd(a, sSA, 4, a_src[1] + a_bytes, 0)
    srd(a, sSW, 6, w_bytes, 0)

    def issue():
        a(f"s_add_u32 m0, s{s_wm}, s{s_lb}")
        a(f"s_add_u32 s{s_t0}, s{s_wn}, s{s_lb}")
        for i in range(nAi):
            a(f"buffer_load_dwordx4 v{16 + i}, s[{sSA}:{sSA + 3}], s{s_a} offen offset:{1024 * i} lds")
        for P in range(NP):
            a(f"s_add_u32 m0, s{s_t0}, {P * PSTR}")
            if P == 0:
                a(f"s_add_u32 s{s_a}, s{s_a}, {KC * 2}")
            else:
                a("s_nop 0")
            a(f"buffer_load_dwordx4 v{20 + P}, s[{sSW}:{sSW + 3}], s{s_b} offen lds")
        a(f"s_add_u32 s{s_b}, s{s_b}, {KC * ldw}")
        a(f"s_add_u32 s{s_lb}, s{s_lb}, {BUFB}")
        a(f"s_add_u32 s{s_bi}, s{s_bi}, 1")
        a(f"s_cmp_eq_u32 s{s_bi}, {NB}")
        a(f"s_cselect_b32 s{s_lb}, 0, s{s_lb}")
        a(f"s_cselect_b32 s{s_bi}, 0, s{s_bi}")

    vml = VM(a)
    st = {"n": 0}

    def issue_upto(j):
        while st["n"] <= min(j, C - 1):
            issue()
            for _ in range(nld):
                vml.issue(st["n"])
            st["n"] += 1

    issue_upto(1)
    for c in range(C):
        vml.wait([c])
        a("s_barrier")
        issue_upto(min(2 * c + 3, c + NB - 1))
    a("s_barrier")
    a.label(f"{name}_end")
    a("s_endpgm")
    return a.lines, descriptor(name, 256 if gen.STAMPS else max(nvgpr, 32), 56), lds_bytes
```

```python
import sys

S, D, DFF = 2048, 512, 1376
WS_QK = 0
WS_VT = 4 << 20
WS_O = 6 << 20
WS_H = 8 << 20
WS_H1 = 10 << 20
KA_X, KA_WQKV, KA_WO, KA_BX, KA_W1, KA_W2, KA_OUT, KA_DBG, KA_WS = [8 * i for i in range(9)]


class Asm:
    def __init__(self):
        self.lines = []

    def __call__(self, s):
        self.lines.append("    " + s)

    def label(self, l):
        self.lines.append(l + ":")

    def c(self, s):
        self.lines.append("    ; " + s)

    def nop(self, n):
        while n > 0:
            k = min(n, 16)
            self(f"s_nop {k - 1}")
            n -= k


STAMPS = False


def stamp(a, vm, i, s_w=24, vb=252):
    if not STAMPS:
        return
    a("s_memtime s[50:51]")
    a("s_waitcnt lgkmcnt(0)")
    a("s_add_u32 s52, s34, 0x8000000")
    a("s_addc_u32 s53, s35, 0")
    a(f"s_lshl_b32 s54, s2, 4")
    a(f"s_add_u32 s54, s54, s{s_w}")
    a(f"s_lshl_b32 s54, s54, 7")
    a(f"s_add_u32 s54, s54, {8 * i}")
    a("s_add_u32 s52, s52, s54")
    a("s_addc_u32 s53, s53, 0")
    a(f"v_mov_b32 v{vb + 2}, s50")
    a(f"v_mov_b32 v{vb + 3}, s51")
    a(f"v_mov_b32 v{vb + 1}, 0")
    a(f"global_store_dwordx2 v{vb + 1}, v[{vb + 2}:{vb + 3}], s[52:53]")
    vm.issue("stamp")


class VM:
    def __init__(self, a):
        self.a = a
        self.q = []

    def issue(self, tag):
        self.q.append(tag)
        assert len(self.q) <= 63, "too many outstanding vmem ops"

    def wait(self, tags):
        idx = [i for i, t in enumerate(self.q) if t in tags]
        if not idx:
            return
        i = max(idx)
        n = len(self.q) - 1 - i
        self.a(f"s_waitcnt vmcnt({n})")
        self.q = self.q[i + 1:]

    def wait_all(self):
        if self.q:
            self.a("s_waitcnt vmcnt(0)")
            self.q = []


def srd(a, sd, sbase, nbytes, off=0):
    if off:
        a(f"s_add_u32 s{sd}, s{sbase}, {off}")
        a(f"s_addc_u32 s{sd + 1}, s{sbase + 1}, 0")
    else:
        a(f"s_mov_b32 s{sd}, s{sbase}")
        a(f"s_mov_b32 s{sd + 1}, s{sbase + 1}")
    a(f"s_mov_b32 s{sd + 2}, {nbytes}")
    a(f"s_mov_b32 s{sd + 3}, 0x00020000")


def header(a, name):
    a.lines.append(f".globl {name}")
    a.lines.append(".p2align 8")
    a.lines.append(f".type {name},@function")
    a.label(name)


def descriptor(name, nvgpr, nsgpr=100):
    acc = (nvgpr + 3) // 4 * 4
    return "\n".join([
        f".amdhsa_kernel {name}",
        f"  .amdhsa_next_free_vgpr {nvgpr}",
        f"  .amdhsa_next_free_sgpr {nsgpr}",
        f"  .amdhsa_accum_offset {acc}",
        "  .amdhsa_group_segment_fixed_size 0",
        "  .amdhsa_kernarg_size 72",
        "  .amdhsa_user_sgpr_count 2",
        "  .amdhsa_user_sgpr_kernarg_segment_ptr 1",
        "  .amdhsa_system_sgpr_workgroup_id_x 1",
        ".end_amdhsa_kernel",
    ])


def vr(b, n=1):
    return f"v{b}" if n == 1 else f"v[{b}:{b + n - 1}]"


class SegBases:
    def __init__(self, a, first_reg):
        self.a = a
        self.next = first_reg
        self.regs = {}

    def prepare(self, key, lane_reg, offsets):
        for seg in sorted(set(o >> 15 for o in offsets)):
            if (key, seg) in self.regs:
                continue
            r = self.next
            self.next += 1
            self.regs[(key, seg)] = r
            if seg == 0:
                self.a(f"v_mov_b32 v{r}, v{lane_reg}")
            else:
                self.a(f"v_add_u32 v{r}, {seg << 15}, v{lane_reg}")

    def ref(self, key, off):
        return self.regs[(key, off >> 15)], off & 32767


def gemm_kernel(name, *, a_src, lda, a_bytes, w_ka, ldw, w_bytes, N, chunks, BM, BN, WGM, WGN,
                NB, a_mode, ln, epi, tiles_n, ntiles, dbg=()):
    a = Asm()
    vm = VM(a)
    RT = BM // WGM // 16
    CT = BN // WGN // 16
    NP = BN // 32
    KSM = max(chunks)
    PSTR = KSM * 2048
    RB = KSM * 64
    APART = BM * RB
    WPART = NP * PSTR
    C = len(chunks)
    kstart = [32 * sum(chunks[:i]) for i in range(C)]
    if a_mode == "regs":
        assert C == 1 and NB == 1
        BUFB = 0
        lds_bytes = max(APART, WPART)
        woff0 = 0
    else:
        BUFB = APART + WPART
        lds_bytes = NB * BUFB
        woff0 = APART
    assert lds_bytes <= 160 * 1024

    vA = 20
    nA = KSM * RT * 4 if a_mode == "regs" else 2 * RT * 4
    vB = vA + nA
    nB = max(2 * CT * 4, 24)
    vC = vB + nB
    nC = RT * CT * 4
    vR = vC + nC
    nR = RT * CT * 2 if epi[0] == "resid" else 0
    sb = SegBases(a, vR + nR)

    def A_reg(s, ks, rt):
        if a_mode == "regs":
            return vA + (ks * RT + rt) * 4
        return vA + (s * RT + rt) * 4

    def B_reg(s, ct):
        return vB + (s * CT + ct) * 4

    def C_reg(rt, ct):
        return vC + (rt * CT + ct) * 4

    sSA, sSW, sSO, sSR = 8, 12, 16, 20
    s_w, s_m0, s_n0, s_t0, s_t1, s_t2, s_wm, s_wn, s_mw, s_nw = 24, 25, 26, 27, 28, 29, 30, 31, 32, 33

    header(a, name)
    a(f"s_cmp_ge_u32 s2, {ntiles}")
    a(f"s_cbranch_scc1 {name}_end")
    a(f"s_load_dwordx2 s[4:5], s[0:1], {a_src[0]}")
    a(f"s_load_dwordx2 s[6:7], s[0:1], {w_ka}")
    a(f"s_load_dwordx2 s[34:35], s[0:1], {KA_WS}")
    a(f"s_load_dwordx2 s[36:37], s[0:1], {KA_OUT}")
    a(f"s_load_dwordx2 s[38:39], s[0:1], {KA_X}")
    magic = (1 << 32) // tiles_n + 1
    a(f"s_mov_b32 s{s_t0}, {magic}")
    a(f"s_mul_hi_u32 s{s_t1}, s2, s{s_t0}")
    a(f"s_mul_i32 s{s_t2}, s{s_t1}, {tiles_n}")
    a(f"s_sub_u32 s{s_t2}, s2, s{s_t2}")
    a(f"s_mul_i32 s{s_m0}, s{s_t1}, {BM}")
    a(f"s_mul_i32 s{s_n0}, s{s_t2}, {BN}")
    a("v_lshrrev_b32 v1, 6, v0")
    a("v_and_b32 v2, 63, v0")
    a.nop(1)
    a(f"v_readfirstlane_b32 s{s_w}, v1")
    a("v_and_b32 v3, 15, v2")
    a("v_lshrrev_b32 v4, 4, v2")
    a.nop(2)
    if WGN == 1:
        a(f"s_mov_b32 s{s_wm}, s{s_w}")
        a(f"s_mov_b32 s{s_wn}, 0")
    else:
        a(f"s_lshr_b32 s{s_wm}, s{s_w}, 1")
        a(f"s_and_b32 s{s_wn}, s{s_w}, 1")
    a(f"s_mul_i32 s{s_mw}, s{s_wm}, {16 * RT}")
    a(f"s_add_u32 s{s_mw}, s{s_mw}, s{s_m0}")
    a(f"s_mul_i32 s{s_nw}, s{s_wn}, {16 * CT}")
    a(f"s_add_u32 s{s_nw}, s{s_nw}, s{s_n0}")
    CPR = RB // 16
    RPI = 64 // CPR
    lg = CPR.bit_length() - 1
    a(f"v_lshrrev_b32 v5, {lg}, v2")
    a(f"v_and_b32 v7, {CPR - 1}, v2")
    a("v_xor_b32 v7, v7, v5")
    a(f"s_mov_b32 s{s_t0}, {lda}")
    a(f"v_mul_lo_u32 v5, v5, s{s_t0}")
    a("v_lshrrev_b32 v6, 2, v2")
    a(f"s_mov_b32 s{s_t0}, {ldw}")
    a(f"v_mul_lo_u32 v6, v6, s{s_t0}")
    a("v_lshrrev_b32 v9, 5, v2")
    a("v_lshlrev_b32 v9, 1, v9")
    a("v_and_b32 v8, 3, v2")
    a("v_xor_b32 v9, v9, v8")
    a("v_lshl_add_u32 v6, v9, 4, v6")
    a("v_bfe_u32 v9, v2, 2, 2")
    a("v_lshl_add_u32 v9, v4, 3, v9")
    a("v_lshlrev_b32 v9, 6, v9")
    a("v_lshl_add_u32 v9, v8, 3, v9")
    a("v_and_b32 v10, 1, v4")
    a("v_lshlrev_b32 v10, 5, v10")
    a("v_xor_b32 v11, 32, v10")
    a("v_add_u32 v10, v9, v10")
    a("v_add_u32 v11, v9, v11")
    if WGN > 1:
        a(f"s_mul_i32 s{s_t0}, s{s_wn}, {PSTR * (CT // 2)}")
        a(f"v_add_u32 v10, s{s_t0}, v10")
        a(f"v_add_u32 v11, s{s_t0}, v11")
    a(f"s_mul_i32 s{s_t0}, s{s_wm}, {16 * RT * RB}")
    a(f"v_lshlrev_b32 v9, {RB.bit_length() - 1}, v3")
    a(f"v_add_u32 v9, s{s_t0}, v9")
    for j in range(4):
        a(f"v_add_u32 v{16 + j}, {4 * j}, v4")
        a(f"v_xor_b32 v{16 + j}, v{16 + j}, v3")
        a(f"v_lshl_add_u32 v{16 + j}, v{16 + j}, 4, v9")
    a("s_waitcnt lgkmcnt(0)")
    srd(a, sSA, 4, a_src[1] + a_bytes, 0)
    srd(a, sSW, 6, w_bytes, 0)
    stamp(a, vm, 0)

    def w_off(c, pp, ks):
        return (c % NB) * BUFB + woff0 + pp * PSTR + ks * 2048

    def a_off(c, rt, ks):
        return (c % NB) * BUFB + 16 * rt * RB + (ks >> 2) * 256

    npw = CT // 2 if WGN > 1 else NP
    for hf in (0, 1):
        sb.prepare(("w", hf), 10 + hf, [w_off(c, pp, ks) + t for c in range(min(C, NB)) for pp in range(npw)
                                        for ks in range(KSM) for t in (0, 256)])
    for j in range(4):
        sb.prepare(("a", j), 16 + j, [a_off(c, rt, ks) for c in range(min(C, NB)) for rt in range(RT)
                                      for ks in range(KSM)])
    nvgpr = sb.next
    assert nvgpr <= 256, nvgpr

    def issue_A(c):
        rows_w = BM // 4
        a(f"s_mul_i32 s{s_t1}, s{s_w}, {rows_w}")
        a(f"s_add_u32 s{s_t0}, s{s_t1}, s{s_m0}")
        a(f"s_mul_i32 s{s_t0}, s{s_t0}, {lda}")
        a(f"s_add_u32 s{s_t0}, s{s_t0}, {a_src[1] + kstart[c] * 2}")
        a(f"s_mul_i32 s{s_t1}, s{s_t1}, {RB}")
        for i in range(rows_w // RPI):
            base_row = i * RPI
            a(f"v_xor_b32 v8, {base_row & 15}, v7")
            a("v_lshl_add_u32 v8, v8, 4, v5")
            a(f"s_add_u32 s{s_t2}, s{s_t1}, {(c % NB) * BUFB + i * 1024}")
            a(f"s_mov_b32 m0, s{s_t2}")
            a(f"s_add_u32 s40, s{s_t0}, {base_row * lda}")
            a(f"buffer_load_dwordx4 v8, s[{sSA}:{sSA + 3}], s40 offen lds")
            vm.issue(("A", c))

    def issue_B(c):
        ksc = chunks[c]
        nper = ksc // 2
        a(f"s_mul_i32 s{s_t1}, s{s_w}, {ksc * 8}")
        a(f"s_add_u32 s{s_t0}, s{s_t1}, {kstart[c]}")
        a(f"s_mul_i32 s{s_t0}, s{s_t0}, {ldw}")
        a(f"s_lshl_b32 s{s_t2}, s{s_n0}, 1")
        a(f"s_add_u32 s{s_t0}, s{s_t0}, s{s_t2}")
        a(f"s_lshl_b32 s{s_t1}, s{s_t1}, 6")
        for P in range(NP):
            for i in range(nper):
                a(f"s_add_u32 s{s_t2}, s{s_t1}, {(c % NB) * BUFB + woff0 + P * PSTR + i * 1024}")
                a(f"s_mov_b32 m0, s{s_t2}")
                a(f"s_add_u32 s40, s{s_t0}, {16 * i * ldw + 64 * P}")
                a(f"buffer_load_dwordx4 v6, s[{sSW}:{sSW + 3}], s40 offen lds")
                vm.issue(("B", c))

    def rd_B(c, ks, s, ct):
        off = w_off(c, ct // 2, ks)
        base, o = sb.ref(("w", ct & 1), off)
        base2, o2 = sb.ref(("w", ct & 1), off + 256)
        r = B_reg(s, ct)
        a(f"ds_read_b64_tr_b16 {vr(r, 2)}, v{base} offset:{o}")
        a(f"ds_read_b64_tr_b16 {vr(r + 2, 2)}, v{base2} offset:{o2}")

    def rd_A(c, ks, s, rt):
        base, o = sb.ref(("a", ks & 3), a_off(c, rt, ks))
        a(f"ds_read_b128 {vr(A_reg(s, ks, rt), 4)}, v{base} offset:{o}")

    if a_mode == "regs":
        issue_A(0)
    else:
        for c in range(min(C, NB)):
            issue_A(c)
            issue_B(c)

    if epi[0] == "qkv":
        srd(a, sSO, 34, WS_QK + S * 1024 * 2, 0)
        srd(a, sSR, 34, WS_VT + 512 * S * 2, 0)
        a("v_lshlrev_b32 v12, 11, v3")
        a("v_lshl_add_u32 v12, v4, 3, v12")
        a("v_lshlrev_b32 v13, 12, v3")
        a("v_lshl_add_u32 v13, v4, 3, v13")
    elif epi[0] == "resid":
        rs_pair = {KA_X: 38, KA_WS: 34, KA_OUT: 36}
        srd(a, sSR, rs_pair[epi[1][0]], epi[1][1] + S * D * 2, 0)
        srd(a, sSO, rs_pair[epi[2][0]], epi[2][1] + S * D * 2, 0)
        a("v_lshlrev_b32 v12, 10, v3")
        a("v_lshl_add_u32 v12, v4, 3, v12")
        for rt in range(RT):
            a(f"s_add_u32 s{s_t0}, s{s_mw}, {16 * rt}")
            a(f"s_lshl_b32 s{s_t0}, s{s_t0}, 10")
            a(f"s_lshl_b32 s{s_t1}, s{s_nw}, 1")
            a(f"s_add_u32 s{s_t0}, s{s_t0}, s{s_t1}")
            a(f"s_add_u32 s{s_t0}, s{s_t0}, {epi[1][1]}")
            for ct in range(CT):
                a(f"buffer_load_dwordx2 {vr(vR + (rt * CT + ct) * 2, 2)}, v12, s[{sSR}:{sSR + 3}], s{s_t0} offen offset:{32 * ct}")
                vm.issue("R")
    elif epi[0] == "relu":
        srd(a, sSO, 34, WS_H1 + S * DFF * 2, 0)
        a(f"s_mov_b32 s{s_t0}, {DFF * 2}")
        a(f"v_mul_lo_u32 v12, v3, s{s_t0}")
        a("v_lshl_add_u32 v12, v4, 3, v12")

    for i in range(nC):
        a(f"v_mov_b32 v{vC + i}, 0")

    if a_mode == "regs":
        stamp(a, vm, 1)
        vm.wait([("A", 0)])
        stamp(a, vm, 2)
        n = 0
        for rt in range(RT):
            for ks in range(chunks[0]):
                rd_A(0, ks, 0, rt)
                n += 1
                if n % 8 == 0:
                    a("s_waitcnt lgkmcnt(4)")
        a("s_waitcnt lgkmcnt(0)")
        a("s_barrier")
        stamp(a, vm, 3)
        issue_B(0)
        stamp(a, vm, 4)

    if ln:
        assert a_mode == "regs"
        a("s_mov_b32 s41, 0x3f803f80")
        a("v_mov_b32 v14, s41")
        tS = vB
        for rt in range(RT):
            for i in range(8):
                a(f"v_mov_b32 v{tS + i}, 0")
            for ks in range(chunks[0]):
                for j in range(4):
                    r = A_reg(0, ks, rt) + j
                    a(f"v_dot2_f32_bf16 v{tS + j}, v{r}, v14, v{tS + j}")
                    a(f"v_dot2_f32_bf16 v{tS + 4 + j}, v{r}, v{r}, v{tS + 4 + j}")
            a.nop(4)
            a(f"v_add_f32 v{tS}, v{tS}, v{tS + 1}")
            a(f"v_add_f32 v{tS + 2}, v{tS + 2}, v{tS + 3}")
            a(f"v_add_f32 v{tS + 4}, v{tS + 4}, v{tS + 5}")
            a(f"v_add_f32 v{tS + 6}, v{tS + 6}, v{tS + 7}")
            a(f"v_add_f32 v{tS}, v{tS}, v{tS + 2}")
            a(f"v_add_f32 v{tS + 1}, v{tS + 4}, v{tS + 6}")
            for sw in ("v_permlane16_swap_b32", "v_permlane32_swap_b32"):
                a(f"v_mov_b32 v{tS + 2}, v{tS}")
                a(f"v_mov_b32 v{tS + 3}, v{tS + 1}")
                a.nop(2)
                a(f"{sw} v{tS}, v{tS + 2}")
                a(f"{sw} v{tS + 1}, v{tS + 3}")
                a.nop(2)
                a(f"v_add_f32 v{tS}, v{tS}, v{tS + 2}")
                a(f"v_add_f32 v{tS + 1}, v{tS + 1}, v{tS + 3}")
            a(f"v_mul_f32 v{tS}, 0x3b000000, v{tS}")
            a(f"v_mul_f32 v{tS + 1}, 0x3b000000, v{tS + 1}")
            a(f"v_fma_f32 v{tS + 2}, -v{tS}, v{tS}, v{tS + 1}")
            a(f"v_max_f32 v{tS + 2}, 0, v{tS + 2}")
            a(f"v_cvt_pk_bf16_f32 v{tS + 3}, v{tS}, v{tS + 2}")
            a.nop(1)
            a(f"v_lshlrev_b32 v{tS}, 16, v{tS + 3}")
            a(f"v_and_b32 v{tS + 2}, 0xffff0000, v{tS + 3}")
            a(f"v_add_f32 v{tS + 2}, 0x3727c5ac, v{tS + 2}")
            a(f"v_cvt_pk_bf16_f32 v{tS + 3}, v{tS + 2}, v{tS + 2}")
            a.nop(1)
            a(f"v_lshlrev_b32 v{tS + 2}, 16, v{tS + 3}")
            a(f"v_sqrt_f32 v{tS + 2}, v{tS + 2}")
            a.nop(1)
            a(f"v_cvt_pk_bf16_f32 v{tS + 3}, v{tS + 2}, v{tS + 2}")
            a.nop(1)
            a(f"v_lshlrev_b32 v{tS + 2}, 16, v{tS + 3}")
            a(f"v_rcp_f32 v{tS + 4}, v{tS + 2}")
            a.nop(1)
            a(f"v_mul_f32 v{tS + 6}, v{tS}, v{tS + 4}")
            a(f"v_sub_f32 v{tS + 6}, 0, v{tS + 6}")
            i = 0
            for ks in range(chunks[0]):
                for j in range(4):
                    r = A_reg(0, ks, rt) + j
                    t = tS + 8 + 2 * (i % 8)
                    i += 1
                    a(f"v_lshlrev_b32 v{t}, 16, v{r}")
                    a(f"v_and_b32 v{t + 1}, 0xffff0000, v{r}")
                    a(f"v_pk_fma_f32 {vr(t, 2)}, {vr(t, 2)}, {vr(tS + 4, 2)}, {vr(tS + 6, 2)} op_sel_hi:[1,0,0]")
                    a(f"v_cvt_pk_bf16_f32 v{r}, v{t}, v{t + 1}")
        a.nop(2)

    def mainloop(orient):
        for c in range(C):
            if c == 0:
                stamp(a, vm, 5)
            vm.wait([("A", c), ("B", c)])
            a("s_barrier")
            if c == 0:
                stamp(a, vm, 6)
            if c >= 1 and c - 1 + NB < C:
                issue_A(c - 1 + NB)
                issue_B(c - 1 + NB)
            if a_mode == "lds":
                for rt in range(RT):
                    rd_A(c, 0, 0, rt)
            for ct in range(CT):
                rd_B(c, 0, 0, ct)
            for ks in range(chunks[c]):
                s = ks & 1
                a("s_waitcnt lgkmcnt(0)")
                nxt = ks + 1 < chunks[c]
                if nxt and a_mode == "lds":
                    for rt in range(RT):
                        rd_A(c, ks + 1, 1 - s, rt)
                for ct in range(CT):
                    if nxt:
                        rd_B(c, ks + 1, 1 - s, ct)
                    for rt in range(RT):
                        cr = C_reg(rt, ct)
                        ar = A_reg(s, ks, rt)
                        br = B_reg(s, ct)
                        if orient[ct] == "W":
                            a(f"v_mfma_f32_16x16x32_bf16 {vr(cr, 4)}, {vr(br, 4)}, {vr(ar, 4)}, {vr(cr, 4)}")
                        else:
                            a(f"v_mfma_f32_16x16x32_bf16 {vr(cr, 4)}, {vr(ar, 4)}, {vr(br, 4)}, {vr(cr, 4)}")
        a.nop(10)
        stamp(a, vm, 7)

    def epilogue(orient):
        t = vB
        if epi[0] == "qkv":
            for rt in range(RT):
                for ct in range(CT):
                    cr = C_reg(rt, ct)
                    tt = t + 2 * ((rt * CT + ct) % 8)
                    a(f"v_cvt_pk_bf16_f32 v{tt}, v{cr}, v{cr + 1}")
                    a(f"v_cvt_pk_bf16_f32 v{tt + 1}, v{cr + 2}, v{cr + 3}")
                    if orient[ct] == "W":
                        a(f"s_add_u32 s{s_t0}, s{s_mw}, {16 * rt}")
                        a(f"s_lshl_b32 s{s_t0}, s{s_t0}, 11")
                        a(f"s_lshl_b32 s{s_t1}, s{s_nw}, 1")
                        a(f"s_add_u32 s{s_t0}, s{s_t0}, s{s_t1}")
                        a(f"buffer_store_dwordx2 {vr(tt, 2)}, v12, s[{sSO}:{sSO + 3}], s{s_t0} offen offset:{32 * ct}")
                    else:
                        a(f"s_add_u32 s{s_t0}, s{s_nw}, {16 * ct - 1024}")
                        a(f"s_lshl_b32 s{s_t0}, s{s_t0}, 12")
                        a(f"s_add_u32 s{s_t1}, s{s_mw}, {16 * rt}")
                        a(f"s_lshl_b32 s{s_t1}, s{s_t1}, 1")
                        a(f"s_add_u32 s{s_t0}, s{s_t0}, s{s_t1}")
                        a(f"s_add_u32 s{s_t0}, s{s_t0}, {WS_VT}")
                        a(f"buffer_store_dwordx2 {vr(tt, 2)}, v13, s[{sSR}:{sSR + 3}], s{s_t0} offen")
        elif epi[0] == "resid":
            vm.wait(["R"])
            for rt in range(RT):
                a(f"s_add_u32 s{s_t0}, s{s_mw}, {16 * rt}")
                a(f"s_lshl_b32 s{s_t0}, s{s_t0}, 10")
                a(f"s_lshl_b32 s{s_t1}, s{s_nw}, 1")
                a(f"s_add_u32 s{s_t0}, s{s_t0}, s{s_t1}")
                a(f"s_add_u32 s{s_t0}, s{s_t0}, {epi[2][1]}")
                for ct in range(CT):
                    cr = C_reg(rt, ct)
                    rr = vR + (rt * CT + ct) * 2
                    tt = t + 4 * ((rt * CT + ct) % 4)
                    a(f"v_cvt_pk_bf16_f32 v{tt}, v{cr}, v{cr + 1}")
                    a(f"v_cvt_pk_bf16_f32 v{tt + 1}, v{cr + 2}, v{cr + 3}")
                    a.nop(1)
                    a(f"v_lshlrev_b32 v{cr}, 16, v{tt}")
                    a(f"v_and_b32 v{cr + 1}, 0xffff0000, v{tt}")
                    a(f"v_lshlrev_b32 v{cr + 2}, 16, v{tt + 1}")
                    a(f"v_and_b32 v{cr + 3}, 0xffff0000, v{tt + 1}")
                    a(f"v_lshlrev_b32 v{tt + 2}, 16, v{rr}")
                    a(f"v_and_b32 v{tt + 3}, 0xffff0000, v{rr}")
                    a(f"v_add_f32 v{cr}, v{cr}, v{tt + 2}")
                    a(f"v_add_f32 v{cr + 1}, v{cr + 1}, v{tt + 3}")
                    a(f"v_lshlrev_b32 v{tt + 2}, 16, v{rr + 1}")
                    a(f"v_and_b32 v{tt + 3}, 0xffff0000, v{rr + 1}")
                    a(f"v_add_f32 v{cr + 2}, v{cr + 2}, v{tt + 2}")
                    a(f"v_add_f32 v{cr + 3}, v{cr + 3}, v{tt + 3}")
                    a(f"v_cvt_pk_bf16_f32 v{tt}, v{cr}, v{cr + 1}")
                    a(f"v_cvt_pk_bf16_f32 v{tt + 1}, v{cr + 2}, v{cr + 3}")
                    a(f"buffer_store_dwordx2 {vr(tt, 2)}, v12, s[{sSO}:{sSO + 3}], s{s_t0} offen offset:{32 * ct}")
        elif epi[0] == "relu":
            for ct in range(CT):
                a(f"s_add_u32 s{s_t2}, s{s_nw}, {16 * ct}")
                a(f"s_cmp_ge_u32 s{s_t2}, {N}")
                a(f"s_cbranch_scc1 {name}_skip{ct}")
                for rt in range(RT):
                    cr = C_reg(rt, ct)
                    tt = t + 2 * ((rt * CT + ct) % 8)
                    for i in range(4):
                        a(f"v_max_f32 v{cr + i}, 0, v{cr + i}")
                    a(f"v_cvt_pk_bf16_f32 v{tt}, v{cr}, v{cr + 1}")
                    a(f"v_cvt_pk_bf16_f32 v{tt + 1}, v{cr + 2}, v{cr + 3}")
                    a(f"s_add_u32 s{s_t0}, s{s_mw}, {16 * rt}")
                    a(f"s_mul_i32 s{s_t0}, s{s_t0}, {DFF * 2}")
                    a(f"s_lshl_b32 s{s_t1}, s{s_nw}, 1")
                    a(f"s_add_u32 s{s_t0}, s{s_t0}, s{s_t1}")
                    a(f"s_add_u32 s{s_t0}, s{s_t0}, {WS_H1}")
                    a(f"buffer_store_dwordx2 {vr(tt, 2)}, v12, s[{sSO}:{sSO + 3}], s{s_t0} offen offset:{32 * ct}")
                a.label(f"{name}_skip{ct}")

    if epi[0] == "qkv":
        variants = {}
        for tn in range(tiles_n):
            o = tuple("W" if (tn * BN + 16 * ct) < 1024 else "X" for ct in range(CT))
            variants.setdefault(o, []).append(tn)
        keys = list(variants.keys())
        saved = list(vm.q)
        for vi, o in enumerate(keys):
            last_tn = max(variants[o])
            if vi < len(keys) - 1:
                a(f"s_cmp_gt_u32 s{s_n0}, {last_tn * BN}")
                a(f"s_cbranch_scc1 {name}_var{vi + 1}")
            vm.q = list(saved)
            mainloop(o)
            epilogue(o)
            stamp(a, vm, 8)
            a("s_endpgm")
            if vi < len(keys) - 1:
                a.label(f"{name}_var{vi + 1}")
    else:
        o = tuple("W" for _ in range(CT))
        mainloop(o)
        epilogue(o)
        stamp(a, vm, 8)
    a.label(f"{name}_end")
    a("s_endpgm")
    return a.lines, descriptor(name, 256 if STAMPS else nvgpr, 56), lds_bytes


def attn_kernel(name):
    a = Asm()
    vm = VM(a)
    NT = 17
    NKEY = 320
    L_K = 0
    L_V = NKEY * 128
    L_Q = L_V + 64 * 640
    lds_bytes = L_Q + 64 * 128
    vS = 32
    vP = vS + 4 * NT
    vF = vP + 36
    vEnd = vF + 36
    s_w, s_q0, s_hg, s_t0, s_t1, s_t2, s_kb, s_qt, s_h = 24, 25, 26, 27, 28, 29, 30, 31, 32
    header(a, name)
    a("s_cmp_ge_u32 s2, 256")
    a(f"s_cbranch_scc1 {name}_end")
    a(f"s_load_dwordx2 s[4:5], s[0:1], {KA_WS}")
    a("v_lshrrev_b32 v1, 6, v0")
    a("v_and_b32 v2, 63, v0")
    a.nop(1)
    a(f"v_readfirstlane_b32 s{s_w}, v1")
    a("v_and_b32 v3, 15, v2")
    a("v_lshrrev_b32 v4, 4, v2")
    a(f"s_and_b32 s{s_q0}, s2, 7")
    a(f"s_lshl_b32 s{s_q0}, s{s_q0}, 2")
    a(f"s_lshr_b32 s{s_t0}, s2, 6")
    a(f"s_add_u32 s{s_q0}, s{s_q0}, s{s_t0}")
    a(f"s_lshl_b32 s{s_q0}, s{s_q0}, 6")
    a(f"s_bfe_u32 s{s_hg}, s2, 0x30003")
    a(f"s_sub_i32 s{s_kb}, s{s_q0}, 256")
    a("s_waitcnt lgkmcnt(0)")
    srd(a, 8, 4, WS_QK + S * 2048, 0)
    srd(a, 12, 4, WS_VT + 512 * 4096, 0)
    srd(a, 16, 4, WS_O + S * 1024, 0)
    if STAMPS:
        a("s_mov_b32 s34, s4")
        a("s_mov_b32 s35, s5")
    stamp(a, vm, 0)
    a("v_lshrrev_b32 v5, 3, v2")
    a("v_and_b32 v6, 7, v2")
    a(f"s_mul_i32 s{s_t0}, s{s_w}, 40")
    a(f"s_lshl_b32 s{s_t1}, s{s_hg}, 7")
    for i in range(5):
        a(f"v_add_u32 v7, s{s_t0}, v5")
        a(f"v_add_u32 v7, {8 * i}, v7")
        a("v_bfe_u32 v8, v7, 1, 3")
        a("v_xor_b32 v8, v8, v6")
        a(f"v_add_u32 v7, s{s_kb}, v7")
        a("v_max_i32 v7, 0, v7")
        a("v_lshlrev_b32 v7, 11, v7")
        a("v_lshl_add_u32 v7, v8, 4, v7")
        a(f"s_lshl_b32 s{s_t2}, s{s_t0}, 7")
        a(f"s_add_u32 s{s_t2}, s{s_t2}, {L_K + i * 1024}")
        a(f"s_mov_b32 m0, s{s_t2}")
        a(f"s_add_u32 s40, s{s_t1}, 1024")
        a("buffer_load_dwordx4 v7, s[8:11], s40 offen lds")
        vm.issue("K")
    a(f"s_lshl_b32 s{s_t1}, s{s_hg}, 18")
    a(f"s_add_u32 s{s_t1}, s{s_t1}, {WS_VT}")
    a(f"s_mul_i32 s{s_t0}, s{s_w}, 320")
    a("s_mov_b32 s41, 1639")
    for i in range(5):
        a(f"v_add_u32 v7, s{s_t0}, v2")
        a(f"v_add_u32 v7, {64 * i}, v7")
        a("v_mul_lo_u32 v8, v7, s41")
        a("v_lshrrev_b32 v8, 16, v8")
        a("v_mul_u32_u24 v9, 40, v8")
        a("v_sub_u32 v9, v7, v9")
        a("v_bfe_u32 v10, v8, 1, 3")
        a("v_xor_b32 v9, v9, v10")
        a("v_lshlrev_b32 v9, 3, v9")
        a(f"v_add_u32 v9, s{s_kb}, v9")
        a("v_max_i32 v9, 0, v9")
        a("v_lshlrev_b32 v9, 1, v9")
        a("v_lshl_add_u32 v9, v8, 12, v9")
        a(f"s_lshl_b32 s{s_t2}, s{s_t0}, 4")
        a(f"s_add_u32 s{s_t2}, s{s_t2}, {L_V + i * 1024}")
        a(f"s_mov_b32 m0, s{s_t2}")
        a(f"buffer_load_dwordx4 v9, s[12:15], s{s_t1} offen lds")
        vm.issue("V")
    a(f"s_lshl_b32 s{s_t0}, s{s_w}, 3")
    a(f"v_add_u32 v7, s{s_t0}, v5")
    a("v_bfe_u32 v8, v7, 1, 3")
    a("v_xor_b32 v8, v8, v6")
    a(f"v_add_u32 v7, s{s_q0}, v7")
    a("v_lshlrev_b32 v7, 11, v7")
    a("v_lshl_add_u32 v7, v8, 4, v7")
    a(f"s_lshl_b32 s{s_t2}, s{s_w}, 10")
    a(f"s_add_u32 s{s_t2}, s{s_t2}, {L_Q}")
    a(f"s_mov_b32 m0, s{s_t2}")
    a(f"s_lshl_b32 s40, s{s_hg}, 7")
    a("buffer_load_dwordx4 v7, s[8:11], s40 offen lds")
    vm.issue("Q")
    a("v_lshlrev_b32 v7, 2, v4")
    a("s_mov_b32 s42, 0xf149f2ca")
    a("v_mov_b32 v10, s42")
    for r in range(4):
        a(f"v_add_u32 v11, {r}, v7")
        a("v_cmp_le_u32 vcc, v11, v3")
        a.nop(2)
        a(f"v_cndmask_b32 v{12 + r}, v10, 0, vcc")
        a(f"v_cndmask_b32 v{24 + r}, 0, v10, vcc")
    a("v_lshlrev_b32 v31, 10, v3")
    a("v_lshl_add_u32 v31, v4, 3, v31")
    stamp(a, vm, 1)
    a("s_waitcnt vmcnt(0)")
    stamp(a, vm, 2)
    a("s_barrier")
    stamp(a, vm, 3)
    a(f"s_and_b32 s{s_h}, s{s_w}, 3")
    a(f"s_lshr_b32 s{s_qt}, s{s_w}, 2")
    a(f"s_lshl_b32 s{s_qt}, s{s_qt}, 1")
    a(f"s_mov_b32 s43, 0")
    a.label(f"{name}_task")
    a(f"s_lshl_b32 s{s_t0}, s{s_h}, 1")
    a("v_lshrrev_b32 v7, 1, v4")
    a(f"v_add_u32 v7, s{s_t0}, v7")
    a("v_lshrrev_b32 v8, 1, v3")
    a("v_xor_b32 v7, v7, v8")
    a("v_lshlrev_b32 v7, 4, v7")
    a("v_lshl_add_u32 v7, v3, 7, v7")
    a("v_and_b32 v9, 1, v4")
    a("v_lshl_add_u32 v7, v9, 3, v7")
    a(f"s_lshl_b32 s{s_t0}, s{s_qt}, 11")
    a(f"v_add_u32 v28, s{s_t0}, v7")
    a(f"v_add_u32 v29, {L_Q}, v28")
    a("ds_read_b64 v[8:9], v29")
    for t in range(NT):
        a(f"ds_read_b64 {vr(vF + 2 * t, 2)}, v28 offset:{t * 2048}")
        if t == 12:
            a("s_waitcnt lgkmcnt(8)")
    a(f"s_mul_i32 s{s_t0}, s{s_h}, {16 * 640}")
    a(f"s_add_u32 s{s_t0}, s{s_t0}, {L_V}")
    a("v_mul_u32_u24 v30, 640, v3")
    a(f"v_add_u32 v30, s{s_t0}, v30")
    a("v_and_b32 v11, 1, v4")
    a("v_lshl_add_u32 v30, v11, 3, v30")
    a("v_lshrrev_b32 v11, 1, v4")
    a("v_lshrrev_b32 v7, 1, v3")
    for r in range(4):
        a(f"v_mov_b32 v{20 + r}, 0")
        a(f"v_mov_b32 v{16 + r}, v{24 + r}")
    a(f"s_lshl_b32 s{s_t1}, s{s_qt}, 4")
    a(f"s_add_i32 s{s_t1}, s{s_t1}, s{s_kb}")
    a("s_waitcnt lgkmcnt(0)")
    for t in range(NT - 1, -1, -1):
        cb = 12 if t == NT - 1 else (16 if t == 0 else 20)
        if t < NT - 1:
            a(f"s_add_i32 s{s_t0}, s{s_t1}, {16 * t}")
            a(f"s_cmp_ge_i32 s{s_t0}, 0")
            a(f"s_cbranch_scc1 {name}_ok{t}")
            a.nop(3)
            for r in range(4):
                a(f"v_mov_b32 v{20 + r}, v10")
                a(f"v_mov_b32 v{16 + r}, v10")
            a.nop(2)
            a.label(f"{name}_ok{t}")
        a(f"v_mfma_f32_16x16x16_bf16 {vr(vS + 4 * t, 4)}, {vr(vF + 2 * t, 2)}, v[8:9], {vr(cb, 4)}")
    stamp(a, vm, 4)
    a(f"s_lshl_b32 s{s_t0}, s{s_qt}, 1")
    a.nop(4)
    for t in range(NT):
        a(f"v_add_u32 v9, {2 * t}, v11")
        a(f"v_add_u32 v9, s{s_t0}, v9")
        a("v_xor_b32 v9, v9, v7")
        a("v_lshl_add_u32 v9, v9, 4, v30")
        a(f"ds_read_b64 {vr(vF + 2 * t, 2)}, v9")
        if t == 12:
            a("s_waitcnt lgkmcnt(8)")
    a(f"v_max3_f32 v8, v{vS}, v{vS + 1}, v{vS + 2}")
    a(f"v_max3_f32 v9, v{vS + 3}, v{vS + 4}, v{vS + 5}")
    i = 6
    k = 0
    while i + 1 < 4 * NT:
        a(f"v_max3_f32 v{8 + (k & 1)}, v{8 + (k & 1)}, v{vS + i}, v{vS + i + 1}")
        i += 2
        k += 1
    a("v_max_f32 v8, v8, v9")
    for sw in ("v_permlane16_swap_b32", "v_permlane32_swap_b32"):
        a("v_mov_b32 v9, v8")
        a.nop(2)
        a(f"{sw} v8, v9")
        a.nop(2)
        a("v_max_f32 v8, v8, v9")
    stamp(a, vm, 5)
    a("s_mov_b32 s41, 0x3eb8aa3b")
    a("v_mul_f32 v9, s41, v8")
    a("v_sub_f32 v9, 0, v9")
    a("v_mov_b32 v8, s41")
    for t in range(NT):
        for i in range(4):
            a(f"v_fma_f32 v{vS + 4 * t + i}, v{vS + 4 * t + i}, v8, v9")
        for i in range(4):
            a(f"v_exp_f32 v{vS + 4 * t + i}, v{vS + 4 * t + i}")
        if t > 0:
            tp = t - 1
            a(f"v_cvt_pk_bf16_f32 v{vP + 2 * tp}, v{vS + 4 * tp}, v{vS + 4 * tp + 1}")
            a(f"v_cvt_pk_bf16_f32 v{vP + 2 * tp + 1}, v{vS + 4 * tp + 2}, v{vS + 4 * tp + 3}")
    a.nop(1)
    tp = NT - 1
    a(f"v_cvt_pk_bf16_f32 v{vP + 2 * tp}, v{vS + 4 * tp}, v{vS + 4 * tp + 1}")
    a(f"v_cvt_pk_bf16_f32 v{vP + 2 * tp + 1}, v{vS + 4 * tp + 2}, v{vS + 4 * tp + 3}")
    stamp(a, vm, 6)
    a("s_mov_b32 s41, 0x3f803f80")
    for r in range(4):
        a(f"v_mov_b32 v{vS + r}, s41")
        a(f"v_mov_b32 v{vS + 4 + r}, 0")
        a(f"v_mov_b32 v{vS + 8 + r}, 0")
    a("s_waitcnt lgkmcnt(0)")
    a.nop(2)
    vO, vL = vS + 4, vS + 8
    for p in range(8):
        a(f"v_mfma_f32_16x16x32_bf16 {vr(vO, 4)}, {vr(vF + 4 * p, 4)}, {vr(vP + 4 * p, 4)}, {vr(vO, 4)}")
        a(f"v_mfma_f32_16x16x32_bf16 {vr(vL, 4)}, {vr(vS, 4)}, {vr(vP + 4 * p, 4)}, {vr(vL, 4)}")
    a.nop(4)
    a(f"v_mfma_f32_16x16x16_bf16 {vr(vO, 4)}, {vr(vF + 32, 2)}, {vr(vP + 32, 2)}, {vr(vO, 4)}")
    a(f"v_mfma_f32_16x16x16_bf16 {vr(vL, 4)}, {vr(vS, 2)}, {vr(vP + 32, 2)}, {vr(vL, 4)}")
    a.nop(10)
    a(f"v_rcp_f32 v{vL}, v{vL}")
    a.nop(1)
    for r in range(4):
        a(f"v_mul_f32 v{vO + r}, v{vO + r}, v{vL}")
    a(f"v_cvt_pk_bf16_f32 v8, v{vO}, v{vO + 1}")
    a(f"v_cvt_pk_bf16_f32 v9, v{vO + 2}, v{vO + 3}")
    a(f"s_lshl_b32 s{s_t0}, s{s_qt}, 4")
    a(f"s_add_u32 s{s_t0}, s{s_t0}, s{s_q0}")
    a(f"s_lshl_b32 s{s_t0}, s{s_t0}, 10")
    a(f"s_lshl_b32 s{s_t1}, s{s_hg}, 2")
    a(f"s_add_u32 s{s_t1}, s{s_t1}, s{s_h}")
    a(f"s_lshl_b32 s{s_t1}, s{s_t1}, 5")
    a(f"s_add_u32 s{s_t0}, s{s_t0}, s{s_t1}")
    a(f"s_add_u32 s{s_t0}, s{s_t0}, {WS_O}")
    a(f"buffer_store_dwordx2 v[8:9], v31, s[16:19], s{s_t0} offen")
    stamp(a, vm, 7)
    a(f"s_add_u32 s{s_qt}, s{s_qt}, 1")
    a("s_add_u32 s43, s43, 1")
    a("s_cmp_lt_u32 s43, 2")
    a.nop(2)
    a(f"s_cbranch_scc1 {name}_task")
    a.label(f"{name}_end")
    a("s_endpgm")
    return a.lines, descriptor(name, 256 if STAMPS else vEnd, 56), lds_bytes


def main():
    global STAMPS
    import os
    STAMPS = bool(os.environ.get("STAMPS"))
    from gemm5 import gemm5 as gemm3
    kernels = []
    kernels.append(("k1_qkv_kernel", 256, 512, gemm3(
        "k1_qkv_kernel", a_src=(KA_X, 0), lda=1024, a_bytes=S * 1024, w_ka=KA_WQKV, ldw=3072,
        w_bytes=512 * 3072, N=1536, nks=16, BM=128, BN=96, WGM=4, WGN=1, NB=5, ln=True,
        epi=("qkv",), tiles_n=16, ntiles=256, pf=(KA_WO, 512 * 1024))))
    from attn3 import attn3
    kernels.append(("k2_attn_kernel", 256, 1024, attn3("k2_attn_kernel")))
    kernels.append(("k3_wo_kernel", 256, 512, gemm3(
        "k3_wo_kernel", a_src=(KA_WS, WS_O), lda=1024, a_bytes=S * 1024, w_ka=KA_WO, ldw=1024,
        w_bytes=512 * 1024, N=512, nks=16, BM=64, BN=64, WGM=2, WGN=2, NB=8, ln=False,
        epi=("resid", (KA_X, 0), (KA_WS, WS_H)), tiles_n=8, ntiles=256, STG=2, pf=(KA_W1, 512 * DFF * 2))))
    kernels.append(("k4_w1_kernel", 240, 512, gemm3(
        "k4_w1_kernel", a_src=(KA_WS, WS_H), lda=1024, a_bytes=S * 1024, w_ka=KA_W1, ldw=DFF * 2,
        w_bytes=512 * DFF * 2, N=DFF, nks=16, BM=128, BN=96, WGM=4, WGN=1, NB=5, ln=True,
        epi=("relu",), tiles_n=15, ntiles=240, pf=(KA_W2, DFF * 1024))))
    kernels.append(("k5_w2_kernel", 256, 512, gemm3(
        "k5_w2_kernel", a_src=(KA_WS, WS_H1), lda=1408 * 2, a_bytes=S * 1408 * 2, w_ka=KA_W2, ldw=1024,
        w_bytes=DFF * 1024, N=512, nks=44, BM=64, BN=64, WGM=2, WGN=2, NB=8,
        ln=False, epi=("resid", (KA_WS, WS_H), (KA_OUT, 0)), tiles_n=8, ntiles=256, STG=2)))

    out = []
    out.append("; preLN -> sliding-window attention -> residual -> preLN -> ReLU FFN -> residual (generated by gen.py)")
    out.append("; kernarg: 0 A_x, 8 A_wqkv, 16 A_wo, 24 B_x, 32 B_w1, 40 B_w2, 48 d_out, 56 d_debug, 64 d_ws")
    for name, grid, blk, (lines, desc, lds) in kernels:
        out.append(f"; @launch kernel={name} grid=({grid},1,1) block=({blk},1,1) lds={lds}")
    out.append('.amdgcn_target "amdgcn-amd-amdhsa--gfx950"')
    out.append(".text")
    for name, grid, blk, (lines, desc, lds) in kernels:
        out.extend(lines)
    out.append('.section .rodata,"a"')
    for name, grid, blk, (lines, desc, lds) in kernels:
        out.append(".p2align 6")
        out.append(desc)
    path = sys.argv[1] if len(sys.argv) > 1 else \
        "sequential_preLN__sliding_block__dense_activation_relu__prompt.s"
    open(path, "w").write("\n".join(out) + "\n")


if __name__ == "__main__":
    import gen
    gen.main()
```

```python
import gen
from gen import (Asm, VM, srd, header, descriptor, vr, S, D, DFF, WS_QK, WS_VT, WS_O, WS_H, WS_H1,
                 KA_X, KA_WS, KA_OUT, stamp)


def gemm5(name, *, a_src, lda, a_bytes, w_ka, ldw, w_bytes, N, nks, BM, BN, WGM, WGN, NB, ln, epi,
          tiles_n, ntiles, STG=1, pf=None, dbg=()):
    a = Asm()
    KC, KS = 64, 2
    assert nks % KS == 0
    C = nks // KS
    assert NB <= C + 1
    RT = BM // WGM // 16
    CT = BN // WGN // 16
    NP = BN // 32
    RB = 128
    APART = BM * RB
    PSTR = KC * 64
    WPART = NP * PSTR
    BUFB = APART + WPART
    L_ST = 0
    RING = 1024
    lds_bytes = RING + NB * BUFB
    assert lds_bytes <= 160 * 1024, lds_bytes
    nAi = APART // 1024 // 4
    assert nAi <= 4
    nld = nAi + NP

    sSA, sSW, sSO, sSR = 8, 12, 16, 20
    s_w, s_m0, s_n0, s_t0, s_t1, s_t2, s_wm, s_wn, s_mw, s_nw = 24, 25, 26, 27, 28, 29, 30, 31, 32, 33
    s_a, s_b, s_lb, s_bi, s_cnt, s_rot = 42, 43, 44, 45, 46, 47

    header(a, name)
    a(f"s_cmp_ge_u32 s2, {ntiles}")
    a(f"s_cbranch_scc1 {name}_end")
    a(f"s_load_dwordx2 s[4:5], s[0:1], {a_src[0]}")
    a(f"s_load_dwordx2 s[6:7], s[0:1], {w_ka}")
    a(f"s_load_dwordx2 s[34:35], s[0:1], {KA_WS}")
    if epi[0] == "resid":
        a(f"s_load_dwordx2 s[36:37], s[0:1], {KA_OUT}")
        a(f"s_load_dwordx2 s[38:39], s[0:1], {KA_X}")
    a("v_lshrrev_b32 v1, 6, v0")
    a("v_and_b32 v2, 63, v0")
    per = (ntiles // tiles_n) // 8
    a(f"s_lshr_b32 s{s_t0}, s2, 3")
    if tiles_n & (tiles_n - 1) == 0:
        a(f"s_lshr_b32 s{s_t1}, s{s_t0}, {tiles_n.bit_length() - 1}")
        a(f"s_and_b32 s{s_t2}, s{s_t0}, {tiles_n - 1}")
    else:
        magic = (1 << 32) // tiles_n + 1
        a(f"s_mov_b32 s{s_t2}, {magic}")
        a(f"s_mul_hi_u32 s{s_t1}, s{s_t0}, s{s_t2}")
        a(f"s_mul_i32 s{s_t2}, s{s_t1}, {tiles_n}")
        a(f"s_sub_u32 s{s_t2}, s{s_t0}, s{s_t2}")
    a(f"s_and_b32 s{s_t0}, s2, 7")
    a(f"s_mul_i32 s{s_t0}, s{s_t0}, {per}")
    a(f"s_add_u32 s{s_t1}, s{s_t1}, s{s_t0}")
    a(f"v_readfirstlane_b32 s{s_w}, v1")
    a(f"s_mul_i32 s{s_m0}, s{s_t1}, {BM}")
    a(f"s_mul_i32 s{s_n0}, s{s_t2}, {BN}")
    a("v_and_b32 v3, 15, v2")
    a("v_lshrrev_b32 v4, 4, v2")
    a(f"s_cmp_ge_u32 s{s_w}, 4")
    a(f"s_cbranch_scc1 {name}_loader")

    vm = VM(a)
    if WGN == 1:
        a(f"s_mul_i32 s{s_mw}, s{s_w}, {16 * RT}")
        a(f"s_mul_i32 s{s_t0}, s{s_w}, {16 * RT * RB}")
        a(f"s_mov_b32 s{s_nw}, s{s_n0}")
        a(f"s_mov_b32 s{s_t1}, {RING}")
    else:
        a(f"s_lshr_b32 s{s_wm}, s{s_w}, 1")
        a(f"s_and_b32 s{s_wn}, s{s_w}, 1")
        a(f"s_mul_i32 s{s_mw}, s{s_wm}, {16 * RT}")
        a(f"s_mul_i32 s{s_t0}, s{s_wm}, {16 * RT * RB}")
        a(f"s_mul_i32 s{s_nw}, s{s_wn}, {16 * CT}")
        a(f"s_add_u32 s{s_nw}, s{s_nw}, s{s_n0}")
        a(f"s_mul_i32 s{s_t1}, s{s_wn}, {PSTR * (CT // 2)}")
        a(f"s_add_u32 s{s_t1}, s{s_t1}, {RING}")
    a(f"s_add_u32 s{s_mw}, s{s_mw}, s{s_m0}")
    a(f"s_add_u32 s{s_t0}, s{s_t0}, {RING}")
    a("v_and_b32 v8, 3, v2")
    a("v_bfe_u32 v9, v2, 2, 2")
    a("v_lshl_add_u32 v9, v4, 3, v9")
    a("v_lshlrev_b32 v9, 6, v9")
    a("v_lshl_add_u32 v9, v8, 3, v9")
    a(f"v_add_u32 v9, s{s_t1}, v9")
    a("v_and_b32 v10, 1, v4")
    a("v_lshlrev_b32 v10, 5, v10")
    a("v_xor_b32 v11, 32, v10")
    a("v_add_u32 v10, v9, v10")
    a("v_add_u32 v11, v9, v11")
    a("v_lshlrev_b32 v9, 7, v3")
    a(f"v_add_u32 v9, s{s_t0}, v9")
    a("v_lshrrev_b32 v8, 1, v3")
    a("v_xor_b32 v12, v4, v8")
    a("v_xor_b32 v13, 4, v12")
    a("v_lshl_add_u32 v12, v12, 4, v9")
    a("v_lshl_add_u32 v13, v13, 4, v9")

    vA = 16
    vB = vA + 2 * STG * RT * 4
    vC = vB + 2 * STG * CT * 4
    vCS = vC + RT * CT * 4
    nCS = CT * 4 if ln else 0
    vST = vCS + nCS
    nST = 8 * RT if ln else 0
    vON = vST + nST
    vRS = vON + (4 if ln else 0)
    rows = 16 * RT
    nvgpr = vRS + (16 if epi[0] == "resid" else 0)
    assert nvgpr <= 256

    def A_reg(s, rt, k=0):
        return vA + ((s * STG + k) * RT + rt) * 4

    def B_reg(s, ct, k=0):
        return vB + ((s * STG + k) * CT + ct) * 4

    def C_reg(rt, ct):
        return vC + (rt * CT + ct) * 4

    for i in range(RT * CT * 4 + nCS + nST):
        a(f"v_mov_b32 v{vC + i}, 0")
    if ln:
        a("s_mov_b32 s41, 0x3f803f80")
        for i in range(4):
            a(f"v_mov_b32 v{vON + i}, s41")
    a(f"s_mov_b32 s{s_bi}, 0")
    a(f"s_mov_b32 s{s_cnt}, {C // STG}")
    a(f"s_mov_b32 s40, {-(NB - 1) * BUFB}")
    a("s_waitcnt lgkmcnt(0)")
    stamp(a, vm, 0)
    if epi[0] == "qkv":
        srd(a, sSO, 34, WS_QK + S * 1024 * 2, 0)
        srd(a, sSR, 34, WS_VT + 512 * S * 2, 0)
    elif epi[0] == "resid":
        rs_pair = {KA_X: 38, KA_WS: 34, KA_OUT: 36}
        srd(a, sSR, rs_pair[epi[1][0]], epi[1][1] + S * D * 2, 0)
        srd(a, sSO, rs_pair[epi[2][0]], epi[2][1] + S * D * 2, 0)
        a("v_lshrrev_b32 v8, 2, v2")
        a("v_and_b32 v9, 3, v2")
        a("v_lshlrev_b32 v14, 10, v8")
        a("v_lshl_add_u32 v14, v9, 4, v14")
        a(f"s_lshl_b32 s{s_t0}, s{s_mw}, 10")
        a(f"s_lshl_b32 s{s_t1}, s{s_nw}, 1")
        a(f"s_add_u32 s{s_a}, s{s_t0}, s{s_t1}")
        a(f"s_add_u32 s{s_t0}, s{s_a}, {epi[1][1]}")
        a(f"s_add_u32 s{s_t1}, s{s_t0}, {16 * 1024}")
        a(f"buffer_load_dwordx4 {vr(vRS, 4)}, v14, s[{sSR}:{sSR + 3}], s{s_t0} offen")
        a(f"buffer_load_dwordx4 {vr(vRS + 4, 4)}, v14, s[{sSR}:{sSR + 3}], s{s_t1} offen")
    elif epi[0] == "relu":
        srd(a, sSO, 34, WS_H1 + S * DFF * 2, 0)

    def rd(ks0, s):
        ops = []
        for k in range(STG):
            ks = ks0 + k
            for rt in range(RT):
                ops.append(f"ds_read_b128 {vr(A_reg(s, rt, k), 4)}, v{12 + ks} offset:{16 * rt * RB}")
            for ct in range(CT):
                o = APART + (ct // 2) * PSTR + ks * 2048
                r = B_reg(s, ct, k)
                ops.append(f"ds_read_b64_tr_b16 {vr(r, 2)}, v{10 + (ct & 1)} offset:{o}")
                ops.append(f"ds_read_b64_tr_b16 {vr(r + 2, 2)}, v{10 + (ct & 1)} offset:{o + 256}")
        return ops

    def mm(d, x, y):
        return f"v_mfma_f32_16x16x32_bf16 {vr(d, 4)}, {vr(x, 4)}, {vr(y, 4)}, {vr(d, 4)}"

    def stage(orient, s, nxt):
        mf = []
        for k in range(STG):
            for ct in range(CT):
                br = B_reg(s, ct, k)
                for rt in range(RT):
                    cr, ar = C_reg(rt, ct), A_reg(s, rt, k)
                    mf.append(mm(cr, br, ar) if orient[ct] == "W" else mm(cr, ar, br))
                if ln:
                    cs = vCS + 4 * ct
                    mf.append(mm(cs, br, vON) if orient[ct] == "W" else mm(cs, vON, br))
                if ln and ct < RT:
                    ar = A_reg(s, ct, k)
                    mf.append(mm(vST + 8 * ct, vON, ar))
                    mf.append(mm(vST + 8 * ct + 4, ar, ar))
        nm = len(mf)
        for i, m in enumerate(mf):
            for op in nxt[i * len(nxt) // nm:(i + 1) * len(nxt) // nm]:
                a(op)
            a(m)

    def rotate():
        a(f"s_add_u32 s{s_bi}, s{s_bi}, 1")
        a(f"s_cmp_eq_u32 s{s_bi}, {NB}")
        a(f"s_cselect_b32 s{s_rot}, s40, {BUFB}")
        a(f"s_cselect_b32 s{s_bi}, 0, s{s_bi}")

    def compute(orient, tag):
        nW = sum(1 for o in orient if o == "W")
        nX = CT - nW
        a("s_barrier")
        stamp(a, vm, 1)
        for op in rd(0, 0):
            a(op)
        bi = 0
        for it in range(C // STG):
            for half in (0, 1):
                newchunk = STG == 2 or half == 1
                a("s_waitcnt lgkmcnt(0)")
                if newchunk:
                    a("s_barrier")
                    bi += 1
                    rot = BUFB
                    if bi == NB:
                        bi = 0
                        rot = -(NB - 1) * BUFB
                    for r in (10, 11, 12, 13):
                        a(f"v_add_u32 v{r}, {rot & 0xffffffff}, v{r}")
                stage(orient, half, rd(0 if newchunk else 1, 1 - half))
        a("s_waitcnt lgkmcnt(0)")
        a.nop(8)
        stamp(a, vm, 2)
        tS = vB
        if ln:
            a("v_lshlrev_b32 v8, 2, v4")
            a("v_sub_u32 v8, v3, v8")
            for rt in range(RT):
                q = vST + 8 * rt
                a(f"v_mov_b32 v{tS + 1}, 0")
                for r in range(4):
                    a(f"v_cmp_eq_u32 vcc, {r}, v8")
                    a.nop(2)
                    a(f"v_cndmask_b32 v{tS + 1}, v{tS + 1}, v{q + 4 + r}, vcc")
                for sw in ("v_permlane16_swap_b32", "v_permlane32_swap_b32"):
                    a(f"v_mov_b32 v{tS + 3}, v{tS + 1}")
                    a.nop(2)
                    a(f"{sw} v{tS + 1}, v{tS + 3}")
                    a.nop(2)
                    a(f"v_add_f32 v{tS + 1}, v{tS + 1}, v{tS + 3}")
                a(f"v_mov_b32 v{tS}, v{q}")
                a(f"v_mul_f32 v{tS}, 0x3b000000, v{tS}")
                a(f"v_mul_f32 v{tS + 1}, 0x3b000000, v{tS + 1}")
                a(f"v_fma_f32 v{tS + 2}, -v{tS}, v{tS}, v{tS + 1}")
                a(f"v_max_f32 v{tS + 2}, 0, v{tS + 2}")
                a(f"v_cvt_pk_bf16_f32 v{tS + 3}, v{tS}, v{tS + 2}")
                a.nop(1)
                a(f"v_lshlrev_b32 v{tS}, 16, v{tS + 3}")
                a(f"v_and_b32 v{tS + 2}, 0xffff0000, v{tS + 3}")
                a(f"v_add_f32 v{tS + 2}, 0x3727c5ac, v{tS + 2}")
                a(f"v_cvt_pk_bf16_f32 v{tS + 3}, v{tS + 2}, v{tS + 2}")
                a.nop(1)
                a(f"v_lshlrev_b32 v{tS + 2}, 16, v{tS + 3}")
                a(f"v_sqrt_f32 v{tS + 2}, v{tS + 2}")
                a.nop(1)
                a(f"v_cvt_pk_bf16_f32 v{tS + 3}, v{tS + 2}, v{tS + 2}")
                a.nop(1)
                a(f"v_lshlrev_b32 v{tS + 2}, 16, v{tS + 3}")
                a(f"v_rcp_f32 v{q}, v{tS + 2}")
                a.nop(1)
                a(f"v_mul_f32 v{q + 2}, -v{tS}, v{q}")
            if nX:
                a(f"s_lshl_b32 s{s_t0}, s{s_w}, 8")
                a("v_lshlrev_b32 v8, 2, v3")
                a(f"v_add_u32 v8, s{s_t0}, v8")
                for rt in range(RT):
                    q = vST + 8 * rt
                    a(f"ds_write_b32 v8, v{q} offset:{L_ST + 64 * rt}")
                    a(f"ds_write_b32 v8, v{q + 2} offset:{L_ST + 128 + 64 * rt}")
                a("v_lshlrev_b32 v8, 4, v4")
                a(f"v_add_u32 v8, s{s_t0}, v8")
                a("s_waitcnt lgkmcnt(0)")
                for rt in range(RT):
                    a(f"ds_read_b128 {vr(B_reg(1, 2 * rt), 4)}, v8 offset:{L_ST + 64 * rt}")
                    a(f"ds_read_b128 {vr(B_reg(1, 2 * rt + 1), 4)}, v8 offset:{L_ST + 128 + 64 * rt}")
                a("s_waitcnt lgkmcnt(0)")
            for rt in range(RT):
                q = vST + 8 * rt
                for ct in range(CT):
                    cr = C_reg(rt, ct)
                    cs = vCS + 4 * ct
                    for i in (0, 2):
                        if orient[ct] == "W":
                            a(f"v_pk_mul_f32 v[8:9], {vr(cs + i, 2)}, {vr(q + 2, 2)} op_sel_hi:[1,0]")
                            a(f"v_pk_fma_f32 {vr(cr + i, 2)}, {vr(cr + i, 2)}, {vr(q, 2)}, v[8:9] op_sel_hi:[1,0,1]")
                        else:
                            a(f"v_pk_mul_f32 v[8:9], {vr(B_reg(1, 2 * rt + 1) + i, 2)}, {vr(cs, 2)} op_sel_hi:[1,0]")
                            a(f"v_pk_fma_f32 {vr(cr + i, 2)}, {vr(cr + i, 2)}, {vr(B_reg(1, 2 * rt) + i, 2)}, v[8:9]")
        a(f"s_lshl_b32 s{s_t0}, s{s_w}, 13")
        a(f"s_add_u32 s{s_t0}, s{s_t0}, {RING}")
        if nW:
            a(f"v_mul_u32_u24 v10, {32 * nW}, v3")
            a("v_lshl_add_u32 v10, v4, 3, v10")
            a(f"v_add_u32 v10, s{s_t0}, v10")
        if nX:
            a(f"v_lshlrev_b32 v11, {(rows * 2).bit_length() - 1}, v3")
            a("v_lshl_add_u32 v11, v4, 3, v11")
            a(f"v_add_u32 v11, s{s_t0}, v11")
        jw = jx = 0
        for ct in range(CT):
            for rt in range(RT):
                cr = C_reg(rt, ct)
                if epi[0] == "relu":
                    for i in range(4):
                        a(f"v_max_f32 v{cr + i}, 0, v{cr + i}")
                a(f"v_cvt_pk_bf16_f32 v{cr}, v{cr}, v{cr + 1}")
                a(f"v_cvt_pk_bf16_f32 v{cr + 1}, v{cr + 2}, v{cr + 3}")
                if orient[ct] == "W":
                    a(f"ds_write_b64 v10, {vr(cr, 2)} offset:{16 * rt * 32 * nW + 32 * jw}")
                else:
                    a(f"ds_write_b64 v11, {vr(cr, 2)} offset:{rows * 32 * nW + 16 * jx * rows * 2 + 32 * rt}")
            if orient[ct] == "W":
                jw += 1
            else:
                jx += 1
        if epi[0] == "resid":
            a("v_lshlrev_b32 v8, 4, v2")
            a(f"v_add_u32 v8, s{s_t0}, v8")
            a("s_waitcnt lgkmcnt(0)")
            a(f"ds_read_b128 {vr(vC, 4)}, v8")
            a(f"ds_read_b128 {vr(vC + 4, 4)}, v8 offset:1024")
            a(f"s_add_u32 s{s_t0}, s{s_a}, {epi[2][1]}")
            a(f"s_add_u32 s{s_t1}, s{s_t0}, {16 * 1024}")
            a("s_waitcnt vmcnt(0) lgkmcnt(0)")
            for i in range(8):
                a(f"v_lshlrev_b32 v8, 16, v{vC + i}")
                a(f"v_and_b32 v9, 0xffff0000, v{vC + i}")
                a(f"v_lshlrev_b32 v10, 16, v{vRS + i}")
                a(f"v_and_b32 v11, 0xffff0000, v{vRS + i}")
                a("v_pk_add_f32 v[8:9], v[8:9], v[10:11]")
                a(f"v_cvt_pk_bf16_f32 v{vC + i}, v8, v9")
            a(f"buffer_store_dwordx4 {vr(vC, 4)}, v14, s[{sSO}:{sSO + 3}], s{s_t0} offen")
            a(f"buffer_store_dwordx4 {vr(vC + 4, 4)}, v14, s[{sSO}:{sSO + 3}], s{s_t1} offen")
        else:
            ldo = 2048 if epi[0] == "qkv" else DFF * 2
            if nW:
                cpr = 2 * nW
                rpi = 1 << ((64 // cpr).bit_length() - 1)
                act = rpi * cpr
                if cpr & (cpr - 1) == 0:
                    a(f"v_lshrrev_b32 v8, {cpr.bit_length() - 1}, v2")
                else:
                    assert cpr == 12
                    a("v_mul_u32_u24 v8, 5462, v2")
                    a("v_lshrrev_b32 v8, 16, v8")
                a(f"v_mul_u32_u24 v9, {cpr}, v8")
                a("v_sub_u32 v9, v2, v9")
                a("v_lshlrev_b32 v12, 4, v2")
                a(f"v_add_u32 v12, s{s_t0}, v12")
                a(f"s_mov_b32 s{s_t1}, {ldo}")
                a(f"v_mul_lo_u32 v13, v8, s{s_t1}")
                a("v_lshl_add_u32 v13, v9, 4, v13")
                if epi[0] == "relu":
                    a(f"v_lshl_add_u32 v9, v9, 3, s{s_nw}")
                    a(f"v_cmp_gt_u32 vcc, {N}, v9")
                    a("v_mov_b32 v9, 0x7fffffff")
                    a.nop(1)
                    a("v_cndmask_b32 v13, v9, v13, vcc")
                    a(f"s_mul_i32 s{s_t1}, s{s_mw}, {ldo}")
                    a(f"s_add_u32 s{s_t1}, s{s_t1}, {WS_H1}")
                else:
                    a(f"s_lshl_b32 s{s_t1}, s{s_mw}, 11")
                a(f"s_lshl_b32 s{s_t2}, s{s_nw}, 1")
                a(f"s_add_u32 s{s_t1}, s{s_t1}, s{s_t2}")
                if act < 64:
                    a(f"s_mov_b64 exec, {(1 << act) - 1}" if act <= 32 else f"s_mov_b32 exec_hi, {(1 << (act - 32)) - 1}")
                a("s_waitcnt lgkmcnt(0)")
                ninst = rows // rpi
                for i in range(ninst):
                    a(f"ds_read_b128 {vr(vC + 4 * i, 4)}, v12 offset:{i * act * 16}")
                for i in range(ninst):
                    a(f"s_waitcnt lgkmcnt({ninst - 1 - i})")
                    a(f"buffer_store_dwordx4 {vr(vC + 4 * i, 4)}, v13, s[{sSO}:{sSO + 3}], s{s_t1} offen")
                    if i + 1 < ninst:
                        a(f"s_add_u32 s{s_t1}, s{s_t1}, {rpi * ldo}")
                if act < 64:
                    a("s_mov_b64 exec, -1")
            if nX:
                a("v_lshrrev_b32 v8, 2, v2")
                a("v_and_b32 v9, 3, v2")
                a("v_lshlrev_b32 v13, 12, v8")
                a("v_lshl_add_u32 v13, v9, 4, v13")
                a("v_lshlrev_b32 v12, 4, v2")
                a(f"v_add_u32 v12, s{s_t0}, v12")
                a(f"s_add_u32 s{s_t1}, s{s_nw}, {16 * nW - 1024}")
                a(f"s_lshl_b32 s{s_t1}, s{s_t1}, 12")
                a(f"s_lshl_b32 s{s_t2}, s{s_mw}, 1")
                a(f"s_add_u32 s{s_t1}, s{s_t1}, s{s_t2}")
                a(f"s_add_u32 s{s_t1}, s{s_t1}, {WS_VT}")
                a("s_waitcnt lgkmcnt(0)")
                vX = vB
                for i in range(nX):
                    a(f"ds_read_b128 {vr(vX + 4 * i, 4)}, v12 offset:{rows * 32 * nW + i * 1024}")
                for i in range(nX):
                    a(f"s_waitcnt lgkmcnt({nX - 1 - i})")
                    a(f"buffer_store_dwordx4 {vr(vX + 4 * i, 4)}, v13, s[{sSR}:{sSR + 3}], s{s_t1} offen")
                    if i + 1 < nX:
                        a(f"s_add_u32 s{s_t1}, s{s_t1}, {16 * 4096}")
        stamp(a, vm, 4)
        a("s_endpgm")

    if epi[0] == "qkv":
        variants = {}
        for tn in range(tiles_n):
            o = tuple("W" if (tn * BN + 16 * ct) < 1024 else "X" for ct in range(CT))
            variants.setdefault(o, []).append(tn)
    else:
        variants = {tuple("W" for _ in range(CT)): list(range(tiles_n))}
    keys = list(variants.keys())
    for vi, o in enumerate(keys):
        if vi < len(keys) - 1:
            a(f"s_cmp_gt_u32 s{s_n0}, {max(variants[o]) * BN}")
            a(f"s_cbranch_scc1 {name}_var{vi + 1}")
        compute(o, vi)
        if vi < len(keys) - 1:
            a.label(f"{name}_var{vi + 1}")

    a.label(f"{name}_loader")
    a(f"s_sub_u32 s{s_w}, s{s_w}, 4")
    a("v_lshrrev_b32 v5, 3, v2")
    a("v_and_b32 v6, 7, v2")
    a(f"s_mov_b32 s{s_t0}, {lda}")
    a("v_lshrrev_b32 v8, 1, v5")
    a("v_xor_b32 v8, v8, v6")
    a(f"v_mul_lo_u32 v7, v5, s{s_t0}")
    for i in range(nAi):
        if i & 1:
            a("v_xor_b32 v9, 4, v8")
            a(f"v_lshl_add_u32 v{16 + i}, v9, 4, v7")
        else:
            a(f"v_lshl_add_u32 v{16 + i}, v8, 4, v7")
        if i:
            a(f"v_add_u32 v{16 + i}, {8 * i * lda - 1024 * i}, v{16 + i}")
    a("v_lshrrev_b32 v6, 2, v2")
    a(f"s_mov_b32 s{s_t0}, {ldw}")
    a(f"v_mul_lo_u32 v6, v6, s{s_t0}")
    a("v_lshrrev_b32 v9, 5, v2")
    a("v_lshlrev_b32 v9, 1, v9")
    a("v_and_b32 v8, 3, v2")
    a("v_xor_b32 v9, v9, v8")
    a("v_lshl_add_u32 v20, v9, 4, v6")
    for P in range(1, NP):
        a(f"v_add_u32 v{20 + P}, {64 * P}, v20")
    a(f"s_mul_i32 s{s_t1}, s{s_w}, {BM // 4}")
    a(f"s_add_u32 s{s_a}, s{s_t1}, s{s_m0}")
    a(f"s_mul_i32 s{s_a}, s{s_a}, {lda}")
    a(f"s_add_u32 s{s_a}, s{s_a}, {a_src[1]}")
    a(f"s_mul_i32 s{s_wm}, s{s_w}, {APART // 4}")
    a(f"s_add_u32 s{s_wm}, s{s_wm}, {RING}")
    a(f"s_mul_i32 s{s_b}, s{s_w}, {16 * ldw}")
    a(f"s_lshl_b32 s{s_t2}, s{s_n0}, 1")
    a(f"s_add_u32 s{s_b}, s{s_b}, s{s_t2}")
    a(f"s_lshl_b32 s{s_wn}, s{s_w}, 10")
    a(f"s_add_u32 s{s_wn}, s{s_wn}, {RING + APART}")
    a(f"s_mov_b32 s{s_lb}, 0")
    a(f"s_mov_b32 s{s_bi}, 0")
    a("s_waitcnt lgkmcnt(0)")
    srd(a, sSA, 4, a_src[1] + a_bytes, 0)
    srd(a, sSW, 6, w_bytes, 0)

    def issue():
        a(f"s_add_u32 m0, s{s_wm}, s{s_lb}")
        a(f"s_add_u32 s{s_t0}, s{s_wn}, s{s_lb}")
        for i in range(nAi):
            a(f"buffer_load_dwordx4 v{16 + i}, s[{sSA}:{sSA + 3}], s{s_a} offen offset:{1024 * i} lds")
        for P in range(NP):
            a(f"s_add_u32 m0, s{s_t0}, {P * PSTR}")
            if P == 0:
                a(f"s_add_u32 s{s_a}, s{s_a}, {KC * 2}")
            else:
                a("s_nop 0")
            a(f"buffer_load_dwordx4 v{20 + P}, s[{sSW}:{sSW + 3}], s{s_b} offen lds")
        a(f"s_add_u32 s{s_b}, s{s_b}, {KC * ldw}")
        a(f"s_add_u32 s{s_lb}, s{s_lb}, {BUFB}")
        a(f"s_add_u32 s{s_bi}, s{s_bi}, 1")
        a(f"s_cmp_eq_u32 s{s_bi}, {NB}")
        a(f"s_cselect_b32 s{s_lb}, 0, s{s_lb}")
        a(f"s_cselect_b32 s{s_bi}, 0, s{s_bi}")

    vml = VM(a)
    st = {"n": 0}

    def issue_upto(j):
        while st["n"] <= min(j, C - 1):
            issue()
            for _ in range(nld):
                vml.issue(st["n"])
            st["n"] += 1

    pfdone = {"d": pf is None}

    def prefetch():
        pfdone["d"] = True
        ka, nbytes = pf
        nsl = ntiles // 8
        per_wave = -(-nbytes // (nsl * 4 * 1024))
        a(f"s_load_dwordx2 s[36:37], s[0:1], {ka}")
        a(f"s_lshr_b32 s{s_t0}, s2, 3")
        a(f"s_lshl_b32 s{s_t0}, s{s_t0}, 2")
        a(f"s_add_u32 s{s_t0}, s{s_t0}, s{s_w}")
        a(f"s_mul_i32 s{s_t0}, s{s_t0}, {per_wave * 1024}")
        a("v_lshlrev_b32 v28, 4, v2")
        a("s_waitcnt lgkmcnt(0)")
        srd(a, sSO, 36, nbytes, 0)
        for i in range(per_wave):
            if i % 4 == 0 and i:
                a(f"s_add_u32 s{s_t0}, s{s_t0}, 4096")
            a(f"buffer_load_dwordx4 v[24:27], v28, s[{sSO}:{sSO + 3}], s{s_t0} offen offset:{(i % 4) * 1024}")
            vml.issue("pf")

    issue_upto(1)
    for c in range(C):
        vml.wait([c])
        a("s_barrier")
        issue_upto(min(2 * c + 3, c + NB - 1))
        if st["n"] == C and not pfdone["d"]:
            prefetch()
    a("s_barrier")
    a.label(f"{name}_end")
    a("s_endpgm")
    return a.lines, descriptor(name, 256 if gen.STAMPS else max(nvgpr, 32), 56), lds_bytes
```

```python
import gen
from gen import (Asm, VM, srd, header, descriptor, vr, S, D, DFF, WS_QK, WS_VT, WS_O, WS_H, WS_H1,
                 KA_X, KA_WS, KA_OUT, stamp)


def gemm5(name, *, a_src, lda, a_bytes, w_ka, ldw, w_bytes, N, nks, BM, BN, WGM, WGN, NB, ln, epi,
          tiles_n, ntiles, STG=1, pf=None, pf0=False, dbg=()):
    a = Asm()
    KC, KS = 64, 2
    assert nks % KS == 0
    C = nks // KS
    assert NB <= C + 1
    RT = BM // WGM // 16
    CT = BN // WGN // 16
    NP = BN // 32
    RB = 128
    APART = BM * RB
    PSTR = KC * 64
    WPART = NP * PSTR
    BUFB = APART + WPART
    L_ST = 0
    L_CS = 1024
    RING = 2048
    lds_bytes = RING + NB * BUFB
    assert lds_bytes <= 160 * 1024, lds_bytes
    nAi = APART // 1024 // 4
    assert nAi <= 4
    nld = nAi + NP

    sSA, sSW, sSO, sSR = 8, 12, 16, 20
    s_w, s_m0, s_n0, s_t0, s_t1, s_t2, s_wm, s_wn, s_mw, s_nw = 24, 25, 26, 27, 28, 29, 30, 31, 32, 33
    s_a, s_b, s_lb, s_bi, s_cnt, s_rot = 42, 43, 44, 45, 46, 47

    header(a, name)
    a(f"s_cmp_ge_u32 s2, {ntiles}")
    a(f"s_cbranch_scc1 {name}_end")
    a(f"s_load_dwordx2 s[4:5], s[0:1], {a_src[0]}")
    a(f"s_load_dwordx2 s[6:7], s[0:1], {w_ka}")
    a(f"s_load_dwordx2 s[34:35], s[0:1], {KA_WS}")
    if epi[0] == "resid":
        a(f"s_load_dwordx2 s[36:37], s[0:1], {KA_OUT}")
        a(f"s_load_dwordx2 s[38:39], s[0:1], {KA_X}")
    a("v_lshrrev_b32 v1, 6, v0")
    a("v_and_b32 v2, 63, v0")
    per = (ntiles // tiles_n) // 8
    a(f"s_lshr_b32 s{s_t0}, s2, 3")
    if tiles_n & (tiles_n - 1) == 0:
        a(f"s_lshr_b32 s{s_t1}, s{s_t0}, {tiles_n.bit_length() - 1}")
        a(f"s_and_b32 s{s_t2}, s{s_t0}, {tiles_n - 1}")
    else:
        magic = (1 << 32) // tiles_n + 1
        a(f"s_mov_b32 s{s_t2}, {magic}")
        a(f"s_mul_hi_u32 s{s_t1}, s{s_t0}, s{s_t2}")
        a(f"s_mul_i32 s{s_t2}, s{s_t1}, {tiles_n}")
        a(f"s_sub_u32 s{s_t2}, s{s_t0}, s{s_t2}")
    a(f"s_and_b32 s{s_t0}, s2, 7")
    a(f"s_mul_i32 s{s_t0}, s{s_t0}, {per}")
    a(f"s_add_u32 s{s_t1}, s{s_t1}, s{s_t0}")
    a(f"v_readfirstlane_b32 s{s_w}, v1")
    a(f"s_mul_i32 s{s_m0}, s{s_t1}, {BM}")
    a(f"s_mul_i32 s{s_n0}, s{s_t2}, {BN}")
    a("v_and_b32 v3, 15, v2")
    a("v_lshrrev_b32 v4, 4, v2")
    a(f"s_cmp_ge_u32 s{s_w}, 4")
    a(f"s_cbranch_scc1 {name}_loader")

    vm = VM(a)
    if WGN == 1:
        a(f"s_mul_i32 s{s_mw}, s{s_w}, {16 * RT}")
        a(f"s_mul_i32 s{s_t0}, s{s_w}, {16 * RT * RB}")
        a(f"s_mov_b32 s{s_nw}, s{s_n0}")
        a(f"s_mov_b32 s{s_t1}, {RING}")
    else:
        a(f"s_lshr_b32 s{s_wm}, s{s_w}, 1")
        a(f"s_and_b32 s{s_wn}, s{s_w}, 1")
        a(f"s_mul_i32 s{s_mw}, s{s_wm}, {16 * RT}")
        a(f"s_mul_i32 s{s_t0}, s{s_wm}, {16 * RT * RB}")
        a(f"s_mul_i32 s{s_nw}, s{s_wn}, {16 * CT}")
        a(f"s_add_u32 s{s_nw}, s{s_nw}, s{s_n0}")
        a(f"s_mul_i32 s{s_t1}, s{s_wn}, {PSTR * (CT // 2)}")
        a(f"s_add_u32 s{s_t1}, s{s_t1}, {RING}")
    a(f"s_add_u32 s{s_mw}, s{s_mw}, s{s_m0}")
    a(f"s_add_u32 s{s_t0}, s{s_t0}, {RING}")
    a("v_and_b32 v8, 3, v2")
    a("v_bfe_u32 v9, v2, 2, 2")
    a("v_lshl_add_u32 v9, v4, 3, v9")
    a("v_lshlrev_b32 v9, 6, v9")
    a("v_lshl_add_u32 v9, v8, 3, v9")
    a(f"v_add_u32 v9, s{s_t1}, v9")
    a("v_and_b32 v10, 1, v4")
    a("v_lshlrev_b32 v10, 5, v10")
    a("v_xor_b32 v11, 32, v10")
    a("v_add_u32 v10, v9, v10")
    a("v_add_u32 v11, v9, v11")
    a("v_lshlrev_b32 v9, 7, v3")
    a(f"v_add_u32 v9, s{s_t0}, v9")
    a("v_lshrrev_b32 v8, 1, v3")
    a("v_xor_b32 v12, v4, v8")
    a("v_xor_b32 v13, 4, v12")
    a("v_lshl_add_u32 v12, v12, 4, v9")
    a("v_lshl_add_u32 v13, v13, 4, v9")
    if ln:
        a(f"s_add_u32 s{s_t0}, s{s_w}, 4")
        a(f"s_cmp_lt_u32 s{s_w}, {CT - 4}")
        a(f"s_cselect_b32 s{s_t1}, s{s_t0}, s{s_w}")
        for j, sc in enumerate((s_w, s_t1)):
            a(f"s_lshr_b32 s{s_t0}, s{sc}, 1")
            a(f"s_mul_i32 s{s_t0}, s{s_t0}, {PSTR}")
            a(f"s_and_b32 s{s_t2}, s{sc}, 1")
            a(f"s_cmp_eq_u32 s{s_t2}, 0")
            a("s_cselect_b64 vcc, -1, 0")
            a(f"v_cndmask_b32 v{14 + j}, v11, v10, vcc")
            a(f"v_add_u32 v{14 + j}, s{s_t0}, v{14 + j}")
            a(f"s_lshl_b32 s{48 + j}, s{sc}, 6")

    vA = 16
    vB = vA + 2 * STG * RT * 4
    vC = vB + 2 * STG * CT * 4
    vCS = vC + RT * CT * 4
    nCS = CT * 4 if ln else 0
    vST = vCS + nCS
    nST = 8 * RT if ln else 0
    vON = vST + nST
    vRS = vON + (4 if ln else 0)
    rows = 16 * RT
    nvgpr = vRS + (16 if epi[0] == "resid" or pf0 else 0)
    assert nvgpr <= 256

    def A_reg(s, rt, k=0):
        return vA + ((s * STG + k) * RT + rt) * 4

    def B_reg(s, ct, k=0):
        return vB + ((s * STG + k) * CT + ct) * 4

    def C_reg(rt, ct):
        return vC + (rt * CT + ct) * 4

    for i in range(RT * CT * 4 + nCS + nST):
        a(f"v_mov_b32 v{vC + i}, 0")
    if ln:
        a("s_mov_b32 s41, 0x3f803f80")
        for i in range(4):
            a(f"v_mov_b32 v{vON + i}, s41")
    a(f"s_mov_b32 s{s_bi}, 0")
    a(f"s_mov_b32 s{s_cnt}, {C // STG}")
    a(f"s_mov_b32 s40, {-(NB - 1) * BUFB}")
    a("s_waitcnt lgkmcnt(0)")
    stamp(a, vm, 0)
    if epi[0] == "qkv":
        srd(a, sSO, 34, WS_QK + S * 1024 * 2, 0)
        srd(a, sSR, 34, WS_VT + 512 * S * 2, 0)
    elif epi[0] == "resid":
        rs_pair = {KA_X: 38, KA_WS: 34, KA_OUT: 36}
        srd(a, sSR, rs_pair[epi[1][0]], epi[1][1] + S * D * 2, 0)
        srd(a, sSO, rs_pair[epi[2][0]], epi[2][1] + S * D * 2, 0)
        a("v_and_b32 v8, 1, v4")
        a("v_lshrrev_b32 v9, 1, v4")
        a("v_lshlrev_b32 v8, 5, v8")
        a("v_lshl_add_u32 v8, v9, 4, v8")
        a("v_lshl_add_u32 v14, v3, 10, v8")
        a(f"s_lshl_b32 s{s_t0}, s{s_mw}, 10")
        a(f"s_lshl_b32 s{s_t1}, s{s_nw}, 1")
        a(f"s_add_u32 s{s_a}, s{s_t0}, s{s_t1}")
        a(f"s_add_u32 s{s_t0}, s{s_a}, {epi[1][1]}")
        a(f"s_add_u32 s{s_t1}, s{s_t0}, {16 * 1024}")
        a(f"buffer_load_dwordx4 {vr(vRS, 4)}, v14, s[{sSR}:{sSR + 3}], s{s_t0} offen")
        a(f"buffer_load_dwordx4 {vr(vRS + 4, 4)}, v14, s[{sSR}:{sSR + 3}], s{s_t1} offen")
    elif epi[0] == "relu":
        srd(a, sSO, 34, WS_H1 + S * DFF * 2, 0)

    if pf0:
        nsl = ntiles // 8
        per_wave = -(-w_bytes // (nsl * 4 * 1024))
        srd(a, sSW, 6, w_bytes, 0)
        a(f"s_lshr_b32 s{s_t0}, s2, 3")
        a(f"s_lshl_b32 s{s_t0}, s{s_t0}, 2")
        a(f"s_add_u32 s{s_t0}, s{s_t0}, s{s_w}")
        a(f"s_mul_i32 s{s_t0}, s{s_t0}, {per_wave * 1024}")
        a("v_lshlrev_b32 v8, 4, v2")
        for i in range(per_wave):
            if i % 4 == 0 and i:
                a(f"s_add_u32 s{s_t0}, s{s_t0}, 4096")
            a(f"buffer_load_dwordx4 {vr(vRS, 4)}, v8, s[{sSW}:{sSW + 3}], s{s_t0} offen offset:{(i % 4) * 1024}")

    def rd(ks0, s):
        ops = []
        for k in range(STG):
            ks = ks0 + k
            for rt in range(RT):
                ops.append(f"ds_read_b128 {vr(A_reg(s, rt, k), 4)}, v{12 + ks} offset:{16 * rt * RB}")
            for ct in range(CT):
                o = APART + (ct // 2) * PSTR + ks * 2048
                r = B_reg(s, ct, k)
                ops.append(f"ds_read_b64_tr_b16 {vr(r, 2)}, v{10 + (ct & 1)} offset:{o}")
                ops.append(f"ds_read_b64_tr_b16 {vr(r + 2, 2)}, v{10 + (ct & 1)} offset:{o + 256}")
            if ln:
                ops.insert(8, "s_waitcnt lgkmcnt(6)")
                for j in range(2):
                    r = vCS + 8 + (s * 2 + j) * 4
                    ops.append(f"ds_read_b64_tr_b16 {vr(r, 2)}, v{14 + j} offset:{APART + ks * 2048}")
                    ops.append(f"ds_read_b64_tr_b16 {vr(r + 2, 2)}, v{14 + j} offset:{APART + ks * 2048 + 256}")
        return ops

    def mm(d, x, y):
        return f"v_mfma_f32_16x16x32_bf16 {vr(d, 4)}, {vr(x, 4)}, {vr(y, 4)}, {vr(d, 4)}"

    def stage(orient, s, nxt):
        mf = []
        for k in range(STG):
            for ct in range(CT):
                br = B_reg(s, ct, k)
                for rt in range(RT):
                    cr, ar = C_reg(rt, ct), A_reg(s, rt, k)
                    mf.append(mm(cr, br, ar) if orient[ct] == "W" else mm(cr, ar, br))
                if ln and 2 <= ct < 4:
                    j = ct - 2
                    mf.append(mm(vCS + 4 * j, vON, vCS + 8 + (s * 2 + j) * 4))
                if ln and ct < RT:
                    ar = A_reg(s, ct, k)
                    mf.append(mm(vST + 8 * ct, vON, ar))
                    mf.append(mm(vST + 8 * ct + 4, ar, ar))
        nm = len(mf)
        for i, m in enumerate(mf):
            for op in nxt[i * len(nxt) // nm:(i + 1) * len(nxt) // nm]:
                a(op)
            a(m)

    def rotate():
        a(f"s_add_u32 s{s_bi}, s{s_bi}, 1")
        a(f"s_cmp_eq_u32 s{s_bi}, {NB}")
        a(f"s_cselect_b32 s{s_rot}, s40, {BUFB}")
        a(f"s_cselect_b32 s{s_bi}, 0, s{s_bi}")

    def compute(orient, tag):
        nW = sum(1 for o in orient if o == "W")
        nX = CT - nW
        if "cut0" in dbg:
            a("s_endpgm")
            return
        a("s_barrier")
        stamp(a, vm, 1)
        for op in rd(0, 0):
            a(op)
        bi = 0
        for it in range(C // STG):
            for half in (0, 1):
                newchunk = STG == 2 or half == 1
                a("s_waitcnt lgkmcnt(0)")
                if newchunk:
                    a("s_barrier")
                    bi += 1
                    rot = BUFB
                    if bi == NB:
                        bi = 0
                        rot = -(NB - 1) * BUFB
                    for r in (10, 11, 12, 13) + ((14, 15) if ln else ()):
                        a(f"v_add_u32 v{r}, {rot & 0xffffffff}, v{r}")
                if "nocomp" not in dbg:
                    stage(orient, half, rd(0 if newchunk else 1, 1 - half))
        a("s_waitcnt lgkmcnt(0)")
        a.nop(8)
        stamp(a, vm, 2)
        if "cut1" in dbg:
            a("s_endpgm")
            return
        tS = vB
        ldo_ = {"qkv": 2048, "resid": 1024, "relu": DFF * 2}[epi[0]]
        if epi[0] != "resid":
            a("v_and_b32 v8, 1, v4")
            a("v_lshrrev_b32 v9, 1, v4")
            a("v_lshlrev_b32 v8, 5, v8")
            a("v_lshl_add_u32 v8, v9, 4, v8")
            a(f"s_mov_b32 s{s_t0}, {ldo_}")
            a(f"v_mul_lo_u32 v14, v3, s{s_t0}")
            a("v_add_u32 v14, v14, v8")
            a("v_lshl_add_u32 v15, v3, 12, v8")
            a(f"s_mul_i32 s{s_a}, s{s_mw}, {ldo_}")
            a(f"s_lshl_b32 s{s_t1}, s{s_nw}, 1")
            a(f"s_add_u32 s{s_a}, s{s_a}, s{s_t1}")
            if epi[0] == "relu":
                a(f"s_add_u32 s{s_a}, s{s_a}, {WS_H1}")
            a(f"s_add_u32 s{s_b}, s{s_nw}, {16 * nW - 1024}")
            a(f"s_lshl_b32 s{s_b}, s{s_b}, 12")
            a(f"s_lshl_b32 s{s_t1}, s{s_mw}, 1")
            a(f"s_add_u32 s{s_b}, s{s_b}, s{s_t1}")
            a(f"s_add_u32 s{s_b}, s{s_b}, {WS_VT}")
        if ln:
            a("v_lshlrev_b32 v8, 2, v3")
            for j in range(2):
                a(f"v_add_u32 v9, s{48 + j}, v8")
                a(f"ds_write_b32 v9, v{vCS + 4 * j} offset:{L_CS}")
            a("s_waitcnt lgkmcnt(0)")
            a("s_barrier")
            a("v_lshlrev_b32 v8, 4, v4")
            a("v_lshlrev_b32 v9, 2, v3")
            for ct in range(CT):
                if orient[ct] == "W":
                    a(f"ds_read_b128 {vr(vCS + 4 * ct, 4)}, v8 offset:{L_CS + 64 * ct}")
                else:
                    a(f"ds_read_b32 v{vCS + 4 * ct}, v9 offset:{L_CS + 64 * ct}")
            a("v_lshlrev_b32 v8, 2, v4")
            a("v_sub_u32 v8, v3, v8")
            for rt in range(RT):
                q = vST + 8 * rt
                a(f"v_mov_b32 v{tS + 1}, 0")
                for r in range(4):
                    a(f"v_cmp_eq_u32 vcc, {r}, v8")
                    a.nop(2)
                    a(f"v_cndmask_b32 v{tS + 1}, v{tS + 1}, v{q + 4 + r}, vcc")
                for sw in ("v_permlane16_swap_b32", "v_permlane32_swap_b32"):
                    a(f"v_mov_b32 v{tS + 3}, v{tS + 1}")
                    a.nop(2)
                    a(f"{sw} v{tS + 1}, v{tS + 3}")
                    a.nop(2)
                    a(f"v_add_f32 v{tS + 1}, v{tS + 1}, v{tS + 3}")
                a(f"v_mov_b32 v{tS}, v{q}")
                a(f"v_mul_f32 v{tS}, 0x3b000000, v{tS}")
                a(f"v_mul_f32 v{tS + 1}, 0x3b000000, v{tS + 1}")
                a(f"v_fma_f32 v{tS + 2}, -v{tS}, v{tS}, v{tS + 1}")
                a(f"v_max_f32 v{tS + 2}, 0, v{tS + 2}")
                a(f"v_cvt_pk_bf16_f32 v{tS + 3}, v{tS}, v{tS + 2}")
                a.nop(1)
                a(f"v_lshlrev_b32 v{tS}, 16, v{tS + 3}")
                a(f"v_and_b32 v{tS + 2}, 0xffff0000, v{tS + 3}")
                a(f"v_add_f32 v{tS + 2}, 0x3727c5ac, v{tS + 2}")
                a(f"v_cvt_pk_bf16_f32 v{tS + 3}, v{tS + 2}, v{tS + 2}")
                a.nop(1)
                a(f"v_lshlrev_b32 v{tS + 2}, 16, v{tS + 3}")
                a(f"v_sqrt_f32 v{tS + 2}, v{tS + 2}")
                a.nop(1)
                a(f"v_cvt_pk_bf16_f32 v{tS + 3}, v{tS + 2}, v{tS + 2}")
                a.nop(1)
                a(f"v_lshlrev_b32 v{tS + 2}, 16, v{tS + 3}")
                a(f"v_rcp_f32 v{q}, v{tS + 2}")
                a.nop(1)
                a(f"v_mul_f32 v{q + 2}, -v{tS}, v{q}")
            if nX:
                a(f"s_lshl_b32 s{s_t0}, s{s_w}, 8")
                a("v_lshlrev_b32 v8, 2, v3")
                a(f"v_add_u32 v8, s{s_t0}, v8")
                for rt in range(RT):
                    q = vST + 8 * rt
                    a(f"ds_write_b32 v8, v{q} offset:{L_ST + 64 * rt}")
                    a(f"ds_write_b32 v8, v{q + 2} offset:{L_ST + 128 + 64 * rt}")
                a("v_lshlrev_b32 v8, 4, v4")
                a(f"v_add_u32 v8, s{s_t0}, v8")
                a("s_waitcnt lgkmcnt(0)")
                for rt in range(RT):
                    a(f"ds_read_b128 {vr(B_reg(1, 2 * rt), 4)}, v8 offset:{L_ST + 64 * rt}")
                    a(f"ds_read_b128 {vr(B_reg(1, 2 * rt + 1), 4)}, v8 offset:{L_ST + 128 + 64 * rt}")
                a("s_waitcnt lgkmcnt(0)")
            a("s_waitcnt lgkmcnt(0)")
            for rt in range(RT):
                q = vST + 8 * rt
                for ct in range(CT):
                    cr = C_reg(rt, ct)
                    cs = vCS + 4 * ct
                    for i in (0, 2):
                        if orient[ct] == "W":
                            a(f"v_pk_mul_f32 v[8:9], {vr(cs + i, 2)}, {vr(q + 2, 2)} op_sel_hi:[1,0]")
                            a(f"v_pk_fma_f32 {vr(cr + i, 2)}, {vr(cr + i, 2)}, {vr(q, 2)}, v[8:9] op_sel_hi:[1,0,1]")
                        else:
                            a(f"v_pk_mul_f32 v[8:9], {vr(B_reg(1, 2 * rt + 1) + i, 2)}, {vr(cs, 2)} op_sel_hi:[1,0]")
                            a(f"v_pk_fma_f32 {vr(cr + i, 2)}, {vr(cr + i, 2)}, {vr(B_reg(1, 2 * rt) + i, 2)}, v[8:9]")
        if "cut2" in dbg:
            a("s_endpgm")
            return
        ldo = {"qkv": 2048, "resid": 1024, "relu": DFF * 2}[epi[0]]
        for rt in range(RT):
            for ct in range(CT):
                cr = C_reg(rt, ct)
                if epi[0] == "relu":
                    for i in range(4):
                        a(f"v_max_f32 v{cr + i}, 0, v{cr + i}")
        pairs = []
        for rt in range(RT):
            for ct in range(0, nW, 2):
                pairs.append((C_reg(rt, ct), C_reg(rt, ct + 1), "W", rt, ct))
        for ct in range(nW, CT):
            pairs.append((C_reg(0, ct), C_reg(1, ct), "X", 0, ct))
        if epi[0] == "resid":
            a("s_waitcnt vmcnt(0)")
        for k, (r0, r1, kind, rt, ct) in enumerate(pairs):
            d = vB + 4 * (k % 6)
            a(f"v_cvt_pk_bf16_f32 v{d}, v{r0}, v{r0 + 1}")
            a(f"v_cvt_pk_bf16_f32 v{d + 1}, v{r0 + 2}, v{r0 + 3}")
            a(f"v_cvt_pk_bf16_f32 v{d + 2}, v{r1}, v{r1 + 1}")
            a(f"v_cvt_pk_bf16_f32 v{d + 3}, v{r1 + 2}, v{r1 + 3}")
            if kind == "W":
                a(f"s_add_u32 s{s_t0}, s{s_a}, {16 * rt * ldo + 32 * ct}")
            else:
                a(f"s_add_u32 s{s_t0}, s{s_b}, {16 * (ct - nW) * 4096}")
            a.nop(1)
            a(f"v_permlane16_swap_b32 v{d}, v{d + 2}")
            a(f"v_permlane16_swap_b32 v{d + 1}, v{d + 3}")
            if epi[0] == "resid":
                a.nop(1)
                for i in range(4):
                    a(f"v_lshlrev_b32 v8, 16, v{d + i}")
                    a(f"v_and_b32 v9, 0xffff0000, v{d + i}")
                    a(f"v_lshlrev_b32 v10, 16, v{vRS + 4 * k + i}")
                    a(f"v_and_b32 v11, 0xffff0000, v{vRS + 4 * k + i}")
                    a("v_pk_add_f32 v[8:9], v[8:9], v[10:11]")
                    a(f"v_cvt_pk_bf16_f32 v{d + i}, v8, v9")
                a(f"s_add_u32 s{s_t0}, s{s_t0}, {epi[2][1]}")
            if epi[0] == "relu":
                a(f"s_add_u32 s{s_t1}, s{s_nw}, {16 * ct}")
                a(f"s_cmp_ge_u32 s{s_t1}, {N}")
                a(f"s_cbranch_scc1 {name}_skip{tag}_{k}")
            if kind == "W":
                a(f"buffer_store_dwordx4 {vr(d, 4)}, v14, s[{sSO}:{sSO + 3}], s{s_t0} offen")
            else:
                a(f"buffer_store_dwordx4 {vr(d, 4)}, v15, s[{sSR}:{sSR + 3}], s{s_t0} offen")
            if epi[0] == "relu":
                a.label(f"{name}_skip{tag}_{k}")
        stamp(a, vm, 4)
        a("s_endpgm")

    if epi[0] == "qkv":
        variants = {}
        for tn in range(tiles_n):
            o = tuple("W" if (tn * BN + 16 * ct) < 1024 else "X" for ct in range(CT))
            variants.setdefault(o, []).append(tn)
    else:
        variants = {tuple("W" for _ in range(CT)): list(range(tiles_n))}
    keys = list(variants.keys())
    for vi, o in enumerate(keys):
        if vi < len(keys) - 1:
            a(f"s_cmp_gt_u32 s{s_n0}, {max(variants[o]) * BN}")
            a(f"s_cbranch_scc1 {name}_var{vi + 1}")
        compute(o, vi)
        if vi < len(keys) - 1:
            a.label(f"{name}_var{vi + 1}")

    a.label(f"{name}_loader")
    if "cut0" in dbg:
        a("s_endpgm")
    a(f"s_sub_u32 s{s_w}, s{s_w}, 4")
    a("v_lshrrev_b32 v5, 3, v2")
    a("v_and_b32 v6, 7, v2")
    a(f"s_mov_b32 s{s_t0}, {lda}")
    a("v_lshrrev_b32 v8, 1, v5")
    a("v_xor_b32 v8, v8, v6")
    a(f"v_mul_lo_u32 v7, v5, s{s_t0}")
    for i in range(nAi):
        if i & 1:
            a("v_xor_b32 v9, 4, v8")
            a(f"v_lshl_add_u32 v{16 + i}, v9, 4, v7")
        else:
            a(f"v_lshl_add_u32 v{16 + i}, v8, 4, v7")
        if i:
            a(f"v_add_u32 v{16 + i}, {8 * i * lda - 1024 * i}, v{16 + i}")
    a("v_lshrrev_b32 v6, 2, v2")
    a(f"s_mov_b32 s{s_t0}, {ldw}")
    a(f"v_mul_lo_u32 v6, v6, s{s_t0}")
    a("v_lshrrev_b32 v9, 5, v2")
    a("v_lshlrev_b32 v9, 1, v9")
    a("v_and_b32 v8, 3, v2")
    a("v_xor_b32 v9, v9, v8")
    a("v_lshl_add_u32 v20, v9, 4, v6")
    for P in range(1, NP):
        a(f"v_add_u32 v{20 + P}, {64 * P}, v20")
    a(f"s_mul_i32 s{s_t1}, s{s_w}, {BM // 4}")
    a(f"s_add_u32 s{s_a}, s{s_t1}, s{s_m0}")
    a(f"s_mul_i32 s{s_a}, s{s_a}, {lda}")
    a(f"s_add_u32 s{s_a}, s{s_a}, {a_src[1]}")
    a(f"s_mul_i32 s{s_wm}, s{s_w}, {APART // 4}")
    a(f"s_add_u32 s{s_wm}, s{s_wm}, {RING}")
    a(f"s_mul_i32 s{s_b}, s{s_w}, {16 * ldw}")
    a(f"s_lshl_b32 s{s_t2}, s{s_n0}, 1")
    a(f"s_add_u32 s{s_b}, s{s_b}, s{s_t2}")
    a(f"s_lshl_b32 s{s_wn}, s{s_w}, 10")
    a(f"s_add_u32 s{s_wn}, s{s_wn}, {RING + APART}")
    a(f"s_mov_b32 s{s_lb}, 0")
    a(f"s_mov_b32 s{s_bi}, 0")
    a("s_waitcnt lgkmcnt(0)")
    srd(a, sSA, 4, a_src[1] + a_bytes, 0)
    srd(a, sSW, 6, w_bytes, 0)

    def issue():
        a(f"s_add_u32 m0, s{s_wm}, s{s_lb}")
        a(f"s_add_u32 s{s_t0}, s{s_wn}, s{s_lb}")
        for i in range(nAi):
            if "noA" in dbg:
                a("s_nop 0")
                continue
            a(f"buffer_load_dwordx4 v{16 + i}, s[{sSA}:{sSA + 3}], s{s_a} offen offset:{1024 * i} lds")
        for P in range(NP):
            a(f"s_add_u32 m0, s{s_t0}, {P * PSTR}")
            if P == 0:
                a(f"s_add_u32 s{s_a}, s{s_a}, {KC * 2}")
            else:
                a("s_nop 0")
            if "noW" in dbg:
                continue
            a(f"buffer_load_dwordx4 v{20 + P}, s[{sSW}:{sSW + 3}], s{s_b} offen lds")
        a(f"s_add_u32 s{s_b}, s{s_b}, {KC * ldw}")
        a(f"s_add_u32 s{s_lb}, s{s_lb}, {BUFB}")
        a(f"s_add_u32 s{s_bi}, s{s_bi}, 1")
        a(f"s_cmp_eq_u32 s{s_bi}, {NB}")
        a(f"s_cselect_b32 s{s_lb}, 0, s{s_lb}")
        a(f"s_cselect_b32 s{s_bi}, 0, s{s_bi}")

    vml = VM(a)
    st = {"n": 0}

    def issue_upto(j):
        while st["n"] <= min(j, C - 1):
            issue()
            for _ in range(nld):
                vml.issue(st["n"])
            st["n"] += 1

    pfdone = {"d": pf is None}

    def prefetch():
        pfdone["d"] = True
        ka, nbytes = pf
        nsl = ntiles // 8
        per_wave = -(-nbytes // (nsl * 4 * 1024))
        a(f"s_load_dwordx2 s[36:37], s[0:1], {ka}")
        a(f"s_lshr_b32 s{s_t0}, s2, 3")
        a(f"s_lshl_b32 s{s_t0}, s{s_t0}, 2")
        a(f"s_add_u32 s{s_t0}, s{s_t0}, s{s_w}")
        a(f"s_mul_i32 s{s_t0}, s{s_t0}, {per_wave * 1024}")
        a("v_lshlrev_b32 v28, 4, v2")
        a("s_waitcnt lgkmcnt(0)")
        srd(a, sSO, 36, nbytes, 0)
        for i in range(per_wave):
            if i % 4 == 0 and i:
                a(f"s_add_u32 s{s_t0}, s{s_t0}, 4096")
            a(f"buffer_load_dwordx4 v[24:27], v28, s[{sSO}:{sSO + 3}], s{s_t0} offen offset:{(i % 4) * 1024}")
            vml.issue("pf")

    issue_upto(1)
    for c in range(C):
        vml.wait([c])
        a("s_barrier")
        issue_upto(min(2 * c + 3, c + NB - 1))
        if st["n"] == C and not pfdone["d"]:
            prefetch()
    a("s_barrier")
    a.label(f"{name}_end")
    a("s_endpgm")
    return a.lines, descriptor(name, 256 if gen.STAMPS else max(nvgpr, 32), 56), lds_bytes
```

```python
import gen
from gen import (Asm, VM, srd, header, descriptor, vr, S, D, DFF, WS_QK, WS_VT, WS_O, WS_H, WS_H1,
                 KA_X, KA_WS, KA_OUT, stamp)


def gemm5(name, *, a_src, lda, a_bytes, w_ka, ldw, w_bytes, N, nks, BM, BN, WGM, WGN, NB, ln, epi,
          tiles_n, ntiles, STG=1, pf=None, pf0=False, dbg=()):
    a = Asm()
    KC, KS = 64, 2
    assert nks % KS == 0
    C = nks // KS
    assert NB <= C + 1
    RT = BM // WGM // 16
    CT = BN // WGN // 16
    NP = BN // 32
    RB = 128
    APART = BM * RB
    PSTR = KC * 64
    WPART = NP * PSTR
    BUFB = APART + WPART
    L_ST = 0
    L_CS = 1024
    RING = 2048
    lds_bytes = RING + NB * BUFB
    assert lds_bytes <= 160 * 1024, lds_bytes
    nAi = APART // 1024 // 4
    assert nAi <= 4
    nld = nAi + NP

    sSA, sSW, sSO, sSR = 8, 12, 16, 20
    s_w, s_m0, s_n0, s_t0, s_t1, s_t2, s_wm, s_wn, s_mw, s_nw = 24, 25, 26, 27, 28, 29, 30, 31, 32, 33
    s_a, s_b, s_lb, s_bi, s_cnt, s_rot = 42, 43, 44, 45, 46, 47

    header(a, name)
    a(f"s_cmp_ge_u32 s2, {ntiles}")
    a(f"s_cbranch_scc1 {name}_end")
    a(f"s_load_dwordx2 s[4:5], s[0:1], {a_src[0]}")
    a(f"s_load_dwordx2 s[6:7], s[0:1], {w_ka}")
    a(f"s_load_dwordx2 s[34:35], s[0:1], {KA_WS}")
    if epi[0] == "resid":
        a(f"s_load_dwordx2 s[36:37], s[0:1], {KA_OUT}")
        a(f"s_load_dwordx2 s[38:39], s[0:1], {KA_X}")
    a("v_lshrrev_b32 v1, 6, v0")
    a("v_and_b32 v2, 63, v0")
    per = (ntiles // tiles_n) // 8
    a(f"s_lshr_b32 s{s_t0}, s2, 3")
    if tiles_n & (tiles_n - 1) == 0:
        a(f"s_lshr_b32 s{s_t1}, s{s_t0}, {tiles_n.bit_length() - 1}")
        a(f"s_and_b32 s{s_t2}, s{s_t0}, {tiles_n - 1}")
    else:
        magic = (1 << 32) // tiles_n + 1
        a(f"s_mov_b32 s{s_t2}, {magic}")
        a(f"s_mul_hi_u32 s{s_t1}, s{s_t0}, s{s_t2}")
        a(f"s_mul_i32 s{s_t2}, s{s_t1}, {tiles_n}")
        a(f"s_sub_u32 s{s_t2}, s{s_t0}, s{s_t2}")
    a(f"s_and_b32 s{s_t0}, s2, 7")
    a(f"s_mul_i32 s{s_t0}, s{s_t0}, {per}")
    a(f"s_add_u32 s{s_t1}, s{s_t1}, s{s_t0}")
    a(f"v_readfirstlane_b32 s{s_w}, v1")
    a(f"s_mul_i32 s{s_m0}, s{s_t1}, {BM}")
    a(f"s_mul_i32 s{s_n0}, s{s_t2}, {BN}")
    a("v_and_b32 v3, 15, v2")
    a("v_lshrrev_b32 v4, 4, v2")
    a(f"s_cmp_ge_u32 s{s_w}, 4")
    a(f"s_cbranch_scc1 {name}_loader")

    import os
    OPT = os.environ.get("OPT", "")
    vm = VM(a)
    if "prioC" in OPT:
        a("s_setprio 2")
    if WGN == 1:
        a(f"s_mul_i32 s{s_mw}, s{s_w}, {16 * RT}")
        a(f"s_mul_i32 s{s_t0}, s{s_w}, {16 * RT * RB}")
        a(f"s_mov_b32 s{s_nw}, s{s_n0}")
        a(f"s_mov_b32 s{s_t1}, {RING}")
    else:
        a(f"s_lshr_b32 s{s_wm}, s{s_w}, 1")
        a(f"s_and_b32 s{s_wn}, s{s_w}, 1")
        a(f"s_mul_i32 s{s_mw}, s{s_wm}, {16 * RT}")
        a(f"s_mul_i32 s{s_t0}, s{s_wm}, {16 * RT * RB}")
        a(f"s_mul_i32 s{s_nw}, s{s_wn}, {16 * CT}")
        a(f"s_add_u32 s{s_nw}, s{s_nw}, s{s_n0}")
        a(f"s_mul_i32 s{s_t1}, s{s_wn}, {PSTR * (CT // 2)}")
        a(f"s_add_u32 s{s_t1}, s{s_t1}, {RING}")
    a(f"s_add_u32 s{s_mw}, s{s_mw}, s{s_m0}")
    a(f"s_add_u32 s{s_t0}, s{s_t0}, {RING}")
    a("v_and_b32 v8, 3, v2")
    a("v_bfe_u32 v9, v2, 2, 2")
    a("v_lshl_add_u32 v9, v4, 3, v9")
    a("v_lshlrev_b32 v9, 6, v9")
    a("v_lshl_add_u32 v9, v8, 3, v9")
    a(f"v_add_u32 v9, s{s_t1}, v9")
    a("v_and_b32 v10, 1, v4")
    a("v_lshlrev_b32 v10, 5, v10")
    a("v_xor_b32 v11, 32, v10")
    a("v_add_u32 v10, v9, v10")
    a("v_add_u32 v11, v9, v11")
    a("v_lshlrev_b32 v9, 7, v3")
    a(f"v_add_u32 v9, s{s_t0}, v9")
    a("v_lshrrev_b32 v8, 1, v3")
    a("v_xor_b32 v12, v4, v8")
    a("v_xor_b32 v13, 4, v12")
    a("v_lshl_add_u32 v12, v12, 4, v9")
    a("v_lshl_add_u32 v13, v13, 4, v9")
    if ln:
        a(f"s_add_u32 s{s_t0}, s{s_w}, 4")
        a(f"s_cmp_lt_u32 s{s_w}, {CT - 4}")
        a(f"s_cselect_b32 s{s_t1}, s{s_t0}, s{s_w}")
        for j, sc in enumerate((s_w, s_t1)):
            a(f"s_lshr_b32 s{s_t0}, s{sc}, 1")
            a(f"s_mul_i32 s{s_t0}, s{s_t0}, {PSTR}")
            a(f"s_and_b32 s{s_t2}, s{sc}, 1")
            a(f"s_cmp_eq_u32 s{s_t2}, 0")
            a("s_cselect_b64 vcc, -1, 0")
            a(f"v_cndmask_b32 v{14 + j}, v11, v10, vcc")
            a(f"v_add_u32 v{14 + j}, s{s_t0}, v{14 + j}")
            a(f"s_lshl_b32 s{48 + j}, s{sc}, 6")

    vA = 16
    vB = vA + 2 * STG * RT * 4
    vC = vB + 2 * STG * CT * 4
    vCS = vC + RT * CT * 4
    nCS = CT * 4 if ln else 0
    vST = vCS + nCS
    nST = 8 * RT if ln else 0
    vON = vST + nST
    vRS = vON + (4 if ln else 0)
    rows = 16 * RT
    nvgpr = vRS + (16 if epi[0] == "resid" or pf0 else 0)
    assert nvgpr <= 256

    def A_reg(s, rt, k=0):
        return vA + ((s * STG + k) * RT + rt) * 4

    def B_reg(s, ct, k=0):
        return vB + ((s * STG + k) * CT + ct) * 4

    def C_reg(rt, ct):
        return vC + (rt * CT + ct) * 4

    for i in range(RT * CT * 4 + nCS + nST):
        a(f"v_mov_b32 v{vC + i}, 0")
    if ln:
        a("s_mov_b32 s41, 0x3f803f80")
        for i in range(4):
            a(f"v_mov_b32 v{vON + i}, s41")
    a(f"s_mov_b32 s{s_bi}, 0")
    a(f"s_mov_b32 s{s_cnt}, {C // STG}")
    a(f"s_mov_b32 s40, {-(NB - 1) * BUFB}")
    a("s_waitcnt lgkmcnt(0)")
    stamp(a, vm, 0)
    if epi[0] == "qkv":
        srd(a, sSO, 34, WS_QK + S * 1024 * 2, 0)
        srd(a, sSR, 34, WS_VT + 512 * S * 2, 0)
    elif epi[0] == "resid":
        rs_pair = {KA_X: 38, KA_WS: 34, KA_OUT: 36}
        srd(a, sSR, rs_pair[epi[1][0]], epi[1][1] + S * D * 2, 0)
        srd(a, sSO, rs_pair[epi[2][0]], epi[2][1] + S * D * 2, 0)
        a("v_and_b32 v8, 1, v4")
        a("v_lshrrev_b32 v9, 1, v4")
        a("v_lshlrev_b32 v8, 5, v8")
        a("v_lshl_add_u32 v8, v9, 4, v8")
        a("v_lshl_add_u32 v14, v3, 10, v8")
        a(f"s_lshl_b32 s{s_t0}, s{s_mw}, 10")
        a(f"s_lshl_b32 s{s_t1}, s{s_nw}, 1")
        a(f"s_add_u32 s{s_a}, s{s_t0}, s{s_t1}")
        a(f"s_add_u32 s{s_t0}, s{s_a}, {epi[1][1]}")
        a(f"s_add_u32 s{s_t1}, s{s_t0}, {16 * 1024}")
        a(f"buffer_load_dwordx4 {vr(vRS, 4)}, v14, s[{sSR}:{sSR + 3}], s{s_t0} offen")
        a(f"buffer_load_dwordx4 {vr(vRS + 4, 4)}, v14, s[{sSR}:{sSR + 3}], s{s_t1} offen")
    elif epi[0] == "relu":
        srd(a, sSO, 34, WS_H1 + S * DFF * 2, 0)

    if pf0:
        nsl = ntiles // 8
        per_wave = -(-w_bytes // (nsl * 4 * 1024))
        srd(a, sSW, 6, w_bytes, 0)
        a(f"s_lshr_b32 s{s_t0}, s2, 3")
        a(f"s_lshl_b32 s{s_t0}, s{s_t0}, 2")
        a(f"s_add_u32 s{s_t0}, s{s_t0}, s{s_w}")
        a(f"s_mul_i32 s{s_t0}, s{s_t0}, {per_wave * 1024}")
        a("v_lshlrev_b32 v8, 4, v2")
        for i in range(per_wave):
            if i % 4 == 0 and i:
                a(f"s_add_u32 s{s_t0}, s{s_t0}, 4096")
            a(f"buffer_load_dwordx4 {vr(vRS, 4)}, v8, s[{sSW}:{sSW + 3}], s{s_t0} offen offset:{(i % 4) * 1024}")

    def rd(ks0, s):
        ops = []
        for k in range(STG):
            ks = ks0 + k
            for rt in range(RT):
                ops.append(f"ds_read_b128 {vr(A_reg(s, rt, k), 4)}, v{12 + ks} offset:{16 * rt * RB}")
            for ct in range(CT):
                o = APART + (ct // 2) * PSTR + ks * 2048
                r = B_reg(s, ct, k)
                ops.append(f"ds_read_b64_tr_b16 {vr(r, 2)}, v{10 + (ct & 1)} offset:{o}")
                ops.append(f"ds_read_b64_tr_b16 {vr(r + 2, 2)}, v{10 + (ct & 1)} offset:{o + 256}")
            if ln:
                ops.insert(8, "s_waitcnt lgkmcnt(6)")
                for j in range(2):
                    r = vCS + 8 + (s * 2 + j) * 4
                    ops.append(f"ds_read_b64_tr_b16 {vr(r, 2)}, v{14 + j} offset:{APART + ks * 2048}")
                    ops.append(f"ds_read_b64_tr_b16 {vr(r + 2, 2)}, v{14 + j} offset:{APART + ks * 2048 + 256}")
        return ops

    def mm(d, x, y):
        return f"v_mfma_f32_16x16x32_bf16 {vr(d, 4)}, {vr(x, 4)}, {vr(y, 4)}, {vr(d, 4)}"

    def stage(orient, s, nxt):
        mf = []
        for k in range(STG):
            for ct in range(CT):
                br = B_reg(s, ct, k)
                for rt in range(RT):
                    cr, ar = C_reg(rt, ct), A_reg(s, rt, k)
                    mf.append(mm(cr, br, ar) if orient[ct] == "W" else mm(cr, ar, br))
                if ln and 2 <= ct < 4:
                    j = ct - 2
                    mf.append(mm(vCS + 4 * j, vON, vCS + 8 + (s * 2 + j) * 4))
                if ln and ct < RT:
                    ar = A_reg(s, ct, k)
                    mf.append(mm(vST + 8 * ct, vON, ar))
                    mf.append(mm(vST + 8 * ct + 4, ar, ar))
        nm = len(mf)
        for i, m in enumerate(mf):
            for op in nxt[i * len(nxt) // nm:(i + 1) * len(nxt) // nm]:
                a(op)
            a(m)

    def rotate():
        a(f"s_add_u32 s{s_bi}, s{s_bi}, 1")
        a(f"s_cmp_eq_u32 s{s_bi}, {NB}")
        a(f"s_cselect_b32 s{s_rot}, s40, {BUFB}")
        a(f"s_cselect_b32 s{s_bi}, 0, s{s_bi}")

    def compute(orient, tag):
        nW = sum(1 for o in orient if o == "W")
        nX = CT - nW
        if "cut0" in dbg:
            a("s_endpgm")
            return
        a("s_barrier")
        stamp(a, vm, 1)
        for op in rd(0, 0):
            a(op)
        bi = 0
        for it in range(C // STG):
            for half in (0, 1):
                newchunk = STG == 2 or half == 1
                a("s_waitcnt lgkmcnt(0)")
                if newchunk:
                    a("s_barrier")
                    bi += 1
                    rot = BUFB
                    if bi == NB:
                        bi = 0
                        rot = -(NB - 1) * BUFB
                    for r in (10, 11, 12, 13) + ((14, 15) if ln else ()):
                        a(f"v_add_u32 v{r}, {rot & 0xffffffff}, v{r}")
                if "nocomp" not in dbg:
                    stage(orient, half, rd(0 if newchunk else 1, 1 - half))
        a("s_waitcnt lgkmcnt(0)")
        a.nop(8)
        stamp(a, vm, 2)
        if "cut1" in dbg:
            a("s_endpgm")
            return
        tS = vB
        ldo_ = {"qkv": 2048, "resid": 1024, "relu": DFF * 2}[epi[0]]
        if epi[0] != "resid":
            a("v_and_b32 v8, 1, v4")
            a("v_lshrrev_b32 v9, 1, v4")
            a("v_lshlrev_b32 v8, 5, v8")
            a("v_lshl_add_u32 v8, v9, 4, v8")
            a(f"s_mov_b32 s{s_t0}, {ldo_}")
            a(f"v_mul_lo_u32 v14, v3, s{s_t0}")
            a("v_add_u32 v14, v14, v8")
            a("v_lshl_add_u32 v15, v3, 12, v8")
            a(f"s_mul_i32 s{s_a}, s{s_mw}, {ldo_}")
            a(f"s_lshl_b32 s{s_t1}, s{s_nw}, 1")
            a(f"s_add_u32 s{s_a}, s{s_a}, s{s_t1}")
            if epi[0] == "relu":
                a(f"s_add_u32 s{s_a}, s{s_a}, {WS_H1}")
            a(f"s_add_u32 s{s_b}, s{s_nw}, {16 * nW - 1024}")
            a(f"s_lshl_b32 s{s_b}, s{s_b}, 12")
            a(f"s_lshl_b32 s{s_t1}, s{s_mw}, 1")
            a(f"s_add_u32 s{s_b}, s{s_b}, s{s_t1}")
            a(f"s_add_u32 s{s_b}, s{s_b}, {WS_VT}")
        if ln:
            a("v_lshlrev_b32 v8, 2, v3")
            for j in range(2):
                a(f"v_add_u32 v9, s{48 + j}, v8")
                a(f"ds_write_b32 v9, v{vCS + 4 * j} offset:{L_CS}")
            a("s_waitcnt lgkmcnt(0)")
            a("s_barrier")
            a("v_lshlrev_b32 v8, 4, v4")
            a("v_lshlrev_b32 v9, 2, v3")
            for ct in range(CT):
                if orient[ct] == "W":
                    a(f"ds_read_b128 {vr(vCS + 4 * ct, 4)}, v8 offset:{L_CS + 64 * ct}")
                else:
                    a(f"ds_read_b32 v{vCS + 4 * ct}, v9 offset:{L_CS + 64 * ct}")
            a("v_lshlrev_b32 v8, 2, v4")
            a("v_sub_u32 v8, v3, v8")
            for rt in range(RT):
                q = vST + 8 * rt
                a(f"v_mov_b32 v{tS + 1}, 0")
                for r in range(4):
                    a(f"v_cmp_eq_u32 vcc, {r}, v8")
                    a.nop(2)
                    a(f"v_cndmask_b32 v{tS + 1}, v{tS + 1}, v{q + 4 + r}, vcc")
                for sw in ("v_permlane16_swap_b32", "v_permlane32_swap_b32"):
                    a(f"v_mov_b32 v{tS + 3}, v{tS + 1}")
                    a.nop(2)
                    a(f"{sw} v{tS + 1}, v{tS + 3}")
                    a.nop(2)
                    a(f"v_add_f32 v{tS + 1}, v{tS + 1}, v{tS + 3}")
                a(f"v_mov_b32 v{tS}, v{q}")
                a(f"v_mul_f32 v{tS}, 0x3b000000, v{tS}")
                a(f"v_mul_f32 v{tS + 1}, 0x3b000000, v{tS + 1}")
                a(f"v_fma_f32 v{tS + 2}, -v{tS}, v{tS}, v{tS + 1}")
                a(f"v_max_f32 v{tS + 2}, 0, v{tS + 2}")
                a(f"v_cvt_pk_bf16_f32 v{tS + 3}, v{tS}, v{tS + 2}")
                a.nop(1)
                a(f"v_lshlrev_b32 v{tS}, 16, v{tS + 3}")
                a(f"v_and_b32 v{tS + 2}, 0xffff0000, v{tS + 3}")
                a(f"v_add_f32 v{tS + 2}, 0x3727c5ac, v{tS + 2}")
                a(f"v_cvt_pk_bf16_f32 v{tS + 3}, v{tS + 2}, v{tS + 2}")
                a.nop(1)
                a(f"v_lshlrev_b32 v{tS + 2}, 16, v{tS + 3}")
                a(f"v_sqrt_f32 v{tS + 2}, v{tS + 2}")
                a.nop(1)
                a(f"v_cvt_pk_bf16_f32 v{tS + 3}, v{tS + 2}, v{tS + 2}")
                a.nop(1)
                a(f"v_lshlrev_b32 v{tS + 2}, 16, v{tS + 3}")
                a(f"v_rcp_f32 v{q}, v{tS + 2}")
                a.nop(1)
                a(f"v_mul_f32 v{q + 2}, -v{tS}, v{q}")
            if nX:
                a(f"s_lshl_b32 s{s_t0}, s{s_w}, 8")
                a("v_lshlrev_b32 v8, 2, v3")
                a(f"v_add_u32 v8, s{s_t0}, v8")
                for rt in range(RT):
                    q = vST + 8 * rt
                    a(f"ds_write_b32 v8, v{q} offset:{L_ST + 64 * rt}")
                    a(f"ds_write_b32 v8, v{q + 2} offset:{L_ST + 128 + 64 * rt}")
                a("v_lshlrev_b32 v8, 4, v4")
                a(f"v_add_u32 v8, s{s_t0}, v8")
                a("s_waitcnt lgkmcnt(0)")
                for rt in range(RT):
                    a(f"ds_read_b128 {vr(B_reg(1, 2 * rt), 4)}, v8 offset:{L_ST + 64 * rt}")
                    a(f"ds_read_b128 {vr(B_reg(1, 2 * rt + 1), 4)}, v8 offset:{L_ST + 128 + 64 * rt}")
                a("s_waitcnt lgkmcnt(0)")
            a("s_waitcnt lgkmcnt(0)")
            for rt in range(RT):
                q = vST + 8 * rt
                for ct in range(CT):
                    cr = C_reg(rt, ct)
                    cs = vCS + 4 * ct
                    for i in (0, 2):
                        if orient[ct] == "W":
                            a(f"v_pk_mul_f32 v[8:9], {vr(cs + i, 2)}, {vr(q + 2, 2)} op_sel_hi:[1,0]")
                            a(f"v_pk_fma_f32 {vr(cr + i, 2)}, {vr(cr + i, 2)}, {vr(q, 2)}, v[8:9] op_sel_hi:[1,0,1]")
                        else:
                            a(f"v_pk_mul_f32 v[8:9], {vr(B_reg(1, 2 * rt + 1) + i, 2)}, {vr(cs, 2)} op_sel_hi:[1,0]")
                            a(f"v_pk_fma_f32 {vr(cr + i, 2)}, {vr(cr + i, 2)}, {vr(B_reg(1, 2 * rt) + i, 2)}, v[8:9]")
        if "cut2" in dbg:
            a("s_endpgm")
            return
        ldo = {"qkv": 2048, "resid": 1024, "relu": DFF * 2}[epi[0]]
        for rt in range(RT):
            for ct in range(CT):
                cr = C_reg(rt, ct)
                if epi[0] == "relu":
                    for i in range(4):
                        a(f"v_max_f32 v{cr + i}, 0, v{cr + i}")
        pairs = []
        for rt in range(RT):
            for ct in range(0, nW, 2):
                pairs.append((C_reg(rt, ct), C_reg(rt, ct + 1), "W", rt, ct))
        for ct in range(nW, CT):
            pairs.append((C_reg(0, ct), C_reg(1, ct), "X", 0, ct))
        if epi[0] == "resid":
            a("s_waitcnt vmcnt(0)")
        for k, (r0, r1, kind, rt, ct) in enumerate(pairs):
            d = vB + 4 * (k % 6)
            a(f"v_cvt_pk_bf16_f32 v{d}, v{r0}, v{r0 + 1}")
            a(f"v_cvt_pk_bf16_f32 v{d + 1}, v{r0 + 2}, v{r0 + 3}")
            a(f"v_cvt_pk_bf16_f32 v{d + 2}, v{r1}, v{r1 + 1}")
            a(f"v_cvt_pk_bf16_f32 v{d + 3}, v{r1 + 2}, v{r1 + 3}")
            if kind == "W":
                a(f"s_add_u32 s{s_t0}, s{s_a}, {16 * rt * ldo + 32 * ct}")
            else:
                a(f"s_add_u32 s{s_t0}, s{s_b}, {16 * (ct - nW) * 4096}")
            a.nop(1)
            a(f"v_permlane16_swap_b32 v{d}, v{d + 2}")
            a(f"v_permlane16_swap_b32 v{d + 1}, v{d + 3}")
            if epi[0] == "resid":
                a.nop(1)
                for i in range(4):
                    a(f"v_lshlrev_b32 v8, 16, v{d + i}")
                    a(f"v_and_b32 v9, 0xffff0000, v{d + i}")
                    a(f"v_lshlrev_b32 v10, 16, v{vRS + 4 * k + i}")
                    a(f"v_and_b32 v11, 0xffff0000, v{vRS + 4 * k + i}")
                    a("v_pk_add_f32 v[8:9], v[8:9], v[10:11]")
                    a(f"v_cvt_pk_bf16_f32 v{d + i}, v8, v9")
                a(f"s_add_u32 s{s_t0}, s{s_t0}, {epi[2][1]}")
            if epi[0] == "relu":
                a(f"s_add_u32 s{s_t1}, s{s_nw}, {16 * ct}")
                a(f"s_cmp_ge_u32 s{s_t1}, {N}")
                a(f"s_cbranch_scc1 {name}_skip{tag}_{k}")
            if kind == "W":
                a(f"buffer_store_dwordx4 {vr(d, 4)}, v14, s[{sSO}:{sSO + 3}], s{s_t0} offen")
            else:
                a(f"buffer_store_dwordx4 {vr(d, 4)}, v15, s[{sSR}:{sSR + 3}], s{s_t0} offen")
            if epi[0] == "relu":
                a.label(f"{name}_skip{tag}_{k}")
        stamp(a, vm, 4)
        a("s_endpgm")

    if epi[0] == "qkv":
        variants = {}
        for tn in range(tiles_n):
            o = tuple("W" if (tn * BN + 16 * ct) < 1024 else "X" for ct in range(CT))
            variants.setdefault(o, []).append(tn)
    else:
        variants = {tuple("W" for _ in range(CT)): list(range(tiles_n))}
    keys = list(variants.keys())
    for vi, o in enumerate(keys):
        if vi < len(keys) - 1:
            a(f"s_cmp_gt_u32 s{s_n0}, {max(variants[o]) * BN}")
            a(f"s_cbranch_scc1 {name}_var{vi + 1}")
        compute(o, vi)
        if vi < len(keys) - 1:
            a.label(f"{name}_var{vi + 1}")

    a.label(f"{name}_loader")
    if "cut0" in dbg:
        a("s_endpgm")
    a(f"s_sub_u32 s{s_w}, s{s_w}, 4")
    if "prioL" in OPT:
        a("s_setprio 3")
    a("v_lshrrev_b32 v5, 3, v2")
    a("v_and_b32 v6, 7, v2")
    a(f"s_mov_b32 s{s_t0}, {lda}")
    a("v_lshrrev_b32 v8, 1, v5")
    a("v_xor_b32 v8, v8, v6")
    a(f"v_mul_lo_u32 v7, v5, s{s_t0}")
    for i in range(nAi):
        if i & 1:
            a("v_xor_b32 v9, 4, v8")
            a(f"v_lshl_add_u32 v{16 + i}, v9, 4, v7")
        else:
            a(f"v_lshl_add_u32 v{16 + i}, v8, 4, v7")
        if i:
            a(f"v_add_u32 v{16 + i}, {8 * i * lda - 1024 * i}, v{16 + i}")
    a("v_lshrrev_b32 v6, 2, v2")
    a(f"s_mov_b32 s{s_t0}, {ldw}")
    a(f"v_mul_lo_u32 v6, v6, s{s_t0}")
    a("v_lshrrev_b32 v9, 5, v2")
    a("v_lshlrev_b32 v9, 1, v9")
    a("v_and_b32 v8, 3, v2")
    a("v_xor_b32 v9, v9, v8")
    a("v_lshl_add_u32 v20, v9, 4, v6")
    for P in range(1, NP):
        a(f"v_add_u32 v{20 + P}, {64 * P}, v20")
    a(f"s_mul_i32 s{s_t1}, s{s_w}, {BM // 4}")
    a(f"s_add_u32 s{s_a}, s{s_t1}, s{s_m0}")
    a(f"s_mul_i32 s{s_a}, s{s_a}, {lda}")
    a(f"s_add_u32 s{s_a}, s{s_a}, {a_src[1]}")
    a(f"s_mul_i32 s{s_wm}, s{s_w}, {APART // 4}")
    a(f"s_add_u32 s{s_wm}, s{s_wm}, {RING}")
    a(f"s_mul_i32 s{s_b}, s{s_w}, {16 * ldw}")
    a(f"s_lshl_b32 s{s_t2}, s{s_n0}, 1")
    a(f"s_add_u32 s{s_b}, s{s_b}, s{s_t2}")
    a(f"s_lshl_b32 s{s_wn}, s{s_w}, 10")
    a(f"s_add_u32 s{s_wn}, s{s_wn}, {RING + APART}")
    a(f"s_mov_b32 s{s_lb}, 0")
    a(f"s_mov_b32 s{s_bi}, 0")
    a("s_waitcnt lgkmcnt(0)")
    srd(a, sSA, 4, a_src[1] + a_bytes, 0)
    srd(a, sSW, 6, w_bytes, 0)

    def issue():
        a(f"s_add_u32 m0, s{s_wm}, s{s_lb}")
        a(f"s_add_u32 s{s_t0}, s{s_wn}, s{s_lb}")
        for i in range(nAi):
            if "noA" in dbg:
                a("s_nop 0")
                continue
            a(f"buffer_load_dwordx4 v{16 + i}, s[{sSA}:{sSA + 3}], s{s_a} offen offset:{1024 * i} lds")
        for P in range(NP):
            a(f"s_add_u32 m0, s{s_t0}, {P * PSTR}")
            if P == 0:
                a(f"s_add_u32 s{s_a}, s{s_a}, {KC * 2}")
            else:
                a("s_nop 0")
            if "noW" in dbg:
                continue
            a(f"buffer_load_dwordx4 v{20 + P}, s[{sSW}:{sSW + 3}], s{s_b} offen lds")
        a(f"s_add_u32 s{s_b}, s{s_b}, {KC * ldw}")
        a(f"s_add_u32 s{s_lb}, s{s_lb}, {BUFB}")
        a(f"s_add_u32 s{s_bi}, s{s_bi}, 1")
        a(f"s_cmp_eq_u32 s{s_bi}, {NB}")
        a(f"s_cselect_b32 s{s_lb}, 0, s{s_lb}")
        a(f"s_cselect_b32 s{s_bi}, 0, s{s_bi}")

    vml = VM(a)
    st = {"n": 0}

    def issue_upto(j):
        while st["n"] <= min(j, C - 1):
            issue()
            for _ in range(nld):
                vml.issue(st["n"])
            st["n"] += 1

    pfdone = {"d": pf is None}

    def prefetch():
        pfdone["d"] = True
        ka, nbytes = pf
        nsl = ntiles // 8
        per_wave = -(-nbytes // (nsl * 4 * 1024))
        a(f"s_load_dwordx2 s[36:37], s[0:1], {ka}")
        a(f"s_lshr_b32 s{s_t0}, s2, 3")
        a(f"s_lshl_b32 s{s_t0}, s{s_t0}, 2")
        a(f"s_add_u32 s{s_t0}, s{s_t0}, s{s_w}")
        a(f"s_mul_i32 s{s_t0}, s{s_t0}, {per_wave * 1024}")
        a("v_lshlrev_b32 v28, 4, v2")
        a("s_waitcnt lgkmcnt(0)")
        srd(a, sSO, 36, nbytes, 0)
        for i in range(per_wave):
            if i % 4 == 0 and i:
                a(f"s_add_u32 s{s_t0}, s{s_t0}, 4096")
            a(f"buffer_load_dwordx4 v[24:27], v28, s[{sSO}:{sSO + 3}], s{s_t0} offen offset:{(i % 4) * 1024}")
            vml.issue("pf")

    g0, g1 = (2, 3) if "deep3" in OPT else ((0, 2) if "deep1" in OPT else (1, 2))
    issue_upto(min(g0, NB - 2))
    for c in range(C):
        vml.wait([c])
        a("s_barrier")
        issue_upto(min(g1 * (c + 1) + g0, c + NB - 1))
        if st["n"] == C and not pfdone["d"]:
            prefetch()
    a("s_barrier")
    a.label(f"{name}_end")
    a("s_endpgm")
    return a.lines, descriptor(name, 256 if gen.STAMPS else max(nvgpr, 32), 56), lds_bytes
```

```python
import gen
from gen import (Asm, VM, srd, header, descriptor, vr, S, D, DFF, WS_QK, WS_VT, WS_O, WS_H, WS_H1,
                 KA_X, KA_WS, KA_OUT, stamp)


def gemm5(name, *, a_src, lda, a_bytes, w_ka, ldw, w_bytes, N, nks, BM, BN, WGM, WGN, NB, ln, epi,
          tiles_n, ntiles, STG=1, pf=None, pf0=False, dbg=()):
    a = Asm()
    KC, KS = 64, 2
    assert nks % KS == 0
    C = nks // KS
    assert NB <= C + 1
    RT = BM // WGM // 16
    CT = BN // WGN // 16
    NP = BN // 32
    RB = 128
    APART = BM * RB
    PSTR = KC * 64
    WPART = NP * PSTR
    BUFB = APART + WPART
    L_ST = 0
    L_CS = 1024
    RING = 2048
    lds_bytes = RING + NB * BUFB
    assert lds_bytes <= 160 * 1024, lds_bytes
    nAi = APART // 1024 // 4
    assert nAi <= 4
    nld = nAi + NP

    sSA, sSW, sSO, sSR = 8, 12, 16, 20
    s_w, s_m0, s_n0, s_t0, s_t1, s_t2, s_wm, s_wn, s_mw, s_nw = 24, 25, 26, 27, 28, 29, 30, 31, 32, 33
    s_a, s_b, s_lb, s_bi, s_cnt, s_rot = 42, 43, 44, 45, 46, 47

    header(a, name)
    a(f"s_cmp_ge_u32 s2, {ntiles}")
    a(f"s_cbranch_scc1 {name}_end")
    a(f"s_load_dwordx2 s[4:5], s[0:1], {a_src[0]}")
    a(f"s_load_dwordx2 s[6:7], s[0:1], {w_ka}")
    a(f"s_load_dwordx2 s[34:35], s[0:1], {KA_WS}")
    if epi[0] == "resid":
        a(f"s_load_dwordx2 s[36:37], s[0:1], {KA_OUT}")
        a(f"s_load_dwordx2 s[38:39], s[0:1], {KA_X}")
    a("v_lshrrev_b32 v1, 6, v0")
    a("v_and_b32 v2, 63, v0")
    per = (ntiles // tiles_n) // 8
    a(f"s_lshr_b32 s{s_t0}, s2, 3")
    if tiles_n & (tiles_n - 1) == 0:
        a(f"s_lshr_b32 s{s_t1}, s{s_t0}, {tiles_n.bit_length() - 1}")
        a(f"s_and_b32 s{s_t2}, s{s_t0}, {tiles_n - 1}")
    else:
        magic = (1 << 32) // tiles_n + 1
        a(f"s_mov_b32 s{s_t2}, {magic}")
        a(f"s_mul_hi_u32 s{s_t1}, s{s_t0}, s{s_t2}")
        a(f"s_mul_i32 s{s_t2}, s{s_t1}, {tiles_n}")
        a(f"s_sub_u32 s{s_t2}, s{s_t0}, s{s_t2}")
    a(f"s_and_b32 s{s_t0}, s2, 7")
    a(f"s_mul_i32 s{s_t0}, s{s_t0}, {per}")
    a(f"s_add_u32 s{s_t1}, s{s_t1}, s{s_t0}")
    a(f"v_readfirstlane_b32 s{s_w}, v1")
    a(f"s_mul_i32 s{s_m0}, s{s_t1}, {BM}")
    a(f"s_mul_i32 s{s_n0}, s{s_t2}, {BN}")
    a("v_and_b32 v3, 15, v2")
    a("v_lshrrev_b32 v4, 4, v2")
    a(f"s_cmp_ge_u32 s{s_w}, 4")
    a(f"s_cbranch_scc1 {name}_loader")

    import os
    OPT = os.environ.get("OPT", "")
    vm = VM(a)
    if "prioC" in OPT:
        a("s_setprio 2")
    if WGN == 1:
        a(f"s_mul_i32 s{s_mw}, s{s_w}, {16 * RT}")
        a(f"s_mul_i32 s{s_t0}, s{s_w}, {16 * RT * RB}")
        a(f"s_mov_b32 s{s_nw}, s{s_n0}")
        a(f"s_mov_b32 s{s_t1}, {RING}")
    else:
        a(f"s_lshr_b32 s{s_wm}, s{s_w}, 1")
        a(f"s_and_b32 s{s_wn}, s{s_w}, 1")
        a(f"s_mul_i32 s{s_mw}, s{s_wm}, {16 * RT}")
        a(f"s_mul_i32 s{s_t0}, s{s_wm}, {16 * RT * RB}")
        a(f"s_mul_i32 s{s_nw}, s{s_wn}, {16 * CT}")
        a(f"s_add_u32 s{s_nw}, s{s_nw}, s{s_n0}")
        a(f"s_mul_i32 s{s_t1}, s{s_wn}, {PSTR * (CT // 2)}")
        a(f"s_add_u32 s{s_t1}, s{s_t1}, {RING}")
    a(f"s_add_u32 s{s_mw}, s{s_mw}, s{s_m0}")
    a(f"s_add_u32 s{s_t0}, s{s_t0}, {RING}")
    a("v_and_b32 v8, 3, v2")
    a("v_bfe_u32 v9, v2, 2, 2")
    a("v_lshl_add_u32 v9, v4, 3, v9")
    a("v_lshlrev_b32 v9, 6, v9")
    a("v_lshl_add_u32 v9, v8, 3, v9")
    a(f"v_add_u32 v9, s{s_t1}, v9")
    a("v_and_b32 v10, 1, v4")
    a("v_lshlrev_b32 v10, 5, v10")
    a("v_xor_b32 v11, 32, v10")
    a("v_add_u32 v10, v9, v10")
    a("v_add_u32 v11, v9, v11")
    a("v_lshlrev_b32 v9, 7, v3")
    a(f"v_add_u32 v9, s{s_t0}, v9")
    a("v_lshrrev_b32 v8, 1, v3")
    a("v_xor_b32 v12, v4, v8")
    a("v_xor_b32 v13, 4, v12")
    a("v_lshl_add_u32 v12, v12, 4, v9")
    a("v_lshl_add_u32 v13, v13, 4, v9")
    if ln:
        a(f"s_add_u32 s{s_t0}, s{s_w}, 4")
        a(f"s_cmp_lt_u32 s{s_w}, {CT - 4}")
        a(f"s_cselect_b32 s{s_t1}, s{s_t0}, s{s_w}")
        for j, sc in enumerate((s_w, s_t1)):
            a(f"s_lshr_b32 s{s_t0}, s{sc}, 1")
            a(f"s_mul_i32 s{s_t0}, s{s_t0}, {PSTR}")
            a(f"s_and_b32 s{s_t2}, s{sc}, 1")
            a(f"s_cmp_eq_u32 s{s_t2}, 0")
            a("s_cselect_b64 vcc, -1, 0")
            a(f"v_cndmask_b32 v{14 + j}, v11, v10, vcc")
            a(f"v_add_u32 v{14 + j}, s{s_t0}, v{14 + j}")
            a(f"s_lshl_b32 s{48 + j}, s{sc}, 6")

    vA = 16
    vB = vA + 2 * STG * RT * 4
    vC = vB + 2 * STG * CT * 4
    vCS = vC + RT * CT * 4
    nCS = CT * 4 if ln else 0
    vST = vCS + nCS
    nST = 8 * RT if ln else 0
    vON = vST + nST
    vRS = vON + (4 if ln else 0)
    rows = 16 * RT
    nvgpr = vRS + (16 if epi[0] == "resid" or pf0 else 0)
    assert nvgpr <= 256

    def A_reg(s, rt, k=0):
        return vA + ((s * STG + k) * RT + rt) * 4

    def B_reg(s, ct, k=0):
        return vB + ((s * STG + k) * CT + ct) * 4

    def C_reg(rt, ct):
        return vC + (rt * CT + ct) * 4

    for i in range(RT * CT * 4 + nCS + nST):
        a(f"v_mov_b32 v{vC + i}, 0")
    if ln:
        a("s_mov_b32 s41, 0x3f803f80")
        for i in range(4):
            a(f"v_mov_b32 v{vON + i}, s41")
    a(f"s_mov_b32 s{s_bi}, 0")
    a(f"s_mov_b32 s{s_cnt}, {C // STG}")
    a(f"s_mov_b32 s40, {-(NB - 1) * BUFB}")
    a("s_waitcnt lgkmcnt(0)")
    stamp(a, vm, 0)
    if epi[0] == "qkv":
        srd(a, sSO, 34, WS_QK + S * 1024 * 2, 0)
        srd(a, sSR, 34, WS_VT + 512 * S * 2, 0)
    elif epi[0] == "resid":
        rs_pair = {KA_X: 38, KA_WS: 34, KA_OUT: 36}
        srd(a, sSR, rs_pair[epi[1][0]], epi[1][1] + S * D * 2, 0)
        srd(a, sSO, rs_pair[epi[2][0]], epi[2][1] + S * D * 2, 0)
        a("v_and_b32 v8, 1, v4")
        a("v_lshrrev_b32 v9, 1, v4")
        a("v_lshlrev_b32 v8, 5, v8")
        a("v_lshl_add_u32 v8, v9, 4, v8")
        a("v_lshl_add_u32 v14, v3, 10, v8")
        a(f"s_lshl_b32 s{s_t0}, s{s_mw}, 10")
        a(f"s_lshl_b32 s{s_t1}, s{s_nw}, 1")
        a(f"s_add_u32 s{s_a}, s{s_t0}, s{s_t1}")
        a(f"s_add_u32 s{s_t0}, s{s_a}, {epi[1][1]}")
        a(f"s_add_u32 s{s_t1}, s{s_t0}, {16 * 1024}")
        a(f"buffer_load_dwordx4 {vr(vRS, 4)}, v14, s[{sSR}:{sSR + 3}], s{s_t0} offen")
        a(f"buffer_load_dwordx4 {vr(vRS + 4, 4)}, v14, s[{sSR}:{sSR + 3}], s{s_t1} offen")
    elif epi[0] == "relu":
        srd(a, sSO, 34, WS_H1 + S * DFF * 2, 0)

    if pf0:
        nsl = ntiles // 8
        per_wave = -(-w_bytes // (nsl * 4 * 1024))
        srd(a, sSW, 6, w_bytes, 0)
        a(f"s_lshr_b32 s{s_t0}, s2, 3")
        a(f"s_lshl_b32 s{s_t0}, s{s_t0}, 2")
        a(f"s_add_u32 s{s_t0}, s{s_t0}, s{s_w}")
        a(f"s_mul_i32 s{s_t0}, s{s_t0}, {per_wave * 1024}")
        a("v_lshlrev_b32 v8, 4, v2")
        for i in range(per_wave):
            if i % 4 == 0 and i:
                a(f"s_add_u32 s{s_t0}, s{s_t0}, 4096")
            a(f"buffer_load_dwordx4 {vr(vRS, 4)}, v8, s[{sSW}:{sSW + 3}], s{s_t0} offen offset:{(i % 4) * 1024}")

    def rd(ks0, s):
        ops = []
        for k in range(STG):
            ks = ks0 + k
            for rt in range(RT):
                ops.append(f"ds_read_b128 {vr(A_reg(s, rt, k), 4)}, v{12 + ks} offset:{16 * rt * RB}")
            for ct in range(CT):
                o = APART + (ct // 2) * PSTR + ks * 2048
                r = B_reg(s, ct, k)
                ops.append(f"ds_read_b64_tr_b16 {vr(r, 2)}, v{10 + (ct & 1)} offset:{o}")
                ops.append(f"ds_read_b64_tr_b16 {vr(r + 2, 2)}, v{10 + (ct & 1)} offset:{o + 256}")
            if ln:
                ops.insert(8, "s_waitcnt lgkmcnt(6)")
                for j in range(2):
                    r = vCS + 8 + (s * 2 + j) * 4
                    ops.append(f"ds_read_b64_tr_b16 {vr(r, 2)}, v{14 + j} offset:{APART + ks * 2048}")
                    ops.append(f"ds_read_b64_tr_b16 {vr(r + 2, 2)}, v{14 + j} offset:{APART + ks * 2048 + 256}")
        return ops

    def mm(d, x, y):
        return f"v_mfma_f32_16x16x32_bf16 {vr(d, 4)}, {vr(x, 4)}, {vr(y, 4)}, {vr(d, 4)}"

    def stage(orient, s, nxt):
        mf = []
        for k in range(STG):
            for ct in range(CT):
                br = B_reg(s, ct, k)
                for rt in range(RT):
                    cr, ar = C_reg(rt, ct), A_reg(s, rt, k)
                    mf.append(mm(cr, br, ar) if orient[ct] == "W" else mm(cr, ar, br))
                if ln and 2 <= ct < 4:
                    j = ct - 2
                    mf.append(mm(vCS + 4 * j, vON, vCS + 8 + (s * 2 + j) * 4))
                if ln and ct < RT:
                    ar = A_reg(s, ct, k)
                    mf.append(mm(vST + 8 * ct, vON, ar))
                    mf.append(mm(vST + 8 * ct + 4, ar, ar))
        nm = len(mf)
        for i, m in enumerate(mf):
            for op in nxt[i * len(nxt) // nm:(i + 1) * len(nxt) // nm]:
                a(op)
            a(m)

    def rotate():
        a(f"s_add_u32 s{s_bi}, s{s_bi}, 1")
        a(f"s_cmp_eq_u32 s{s_bi}, {NB}")
        a(f"s_cselect_b32 s{s_rot}, s40, {BUFB}")
        a(f"s_cselect_b32 s{s_bi}, 0, s{s_bi}")

    def compute(orient, tag):
        nW = sum(1 for o in orient if o == "W")
        nX = CT - nW
        if "cut0" in dbg:
            a("s_endpgm")
            return
        a("s_barrier")
        stamp(a, vm, 1)
        for op in rd(0, 0):
            a(op)
        bi = 0
        roll = "roll" in OPT
        if roll:
            a.label(f"{name}_loop{tag}")
        for it in range(1 if roll else C // STG):
            for half in (0, 1):
                newchunk = STG == 2 or half == 1
                if roll and newchunk:
                    rotate()
                if roll and half == 1:
                    a(f"s_sub_u32 s{s_cnt}, s{s_cnt}, 1")
                a("s_waitcnt lgkmcnt(0)")
                if newchunk:
                    a("s_barrier")
                    bi += 1
                    rot = BUFB
                    if bi == NB:
                        bi = 0
                        rot = -(NB - 1) * BUFB
                    for r in (10, 11, 12, 13) + ((14, 15) if ln else ()):
                        if roll:
                            a(f"v_add_u32 v{r}, s{s_rot}, v{r}")
                        else:
                            a(f"v_add_u32 v{r}, {rot & 0xffffffff}, v{r}")
                if "nocomp" not in dbg:
                    stage(orient, half, rd(0 if newchunk else 1, 1 - half))
        if roll:
            a(f"s_cmp_lg_u32 s{s_cnt}, 0")
            a(f"s_cbranch_scc1 {name}_loop{tag}")
        a("s_waitcnt lgkmcnt(0)")
        a.nop(8)
        stamp(a, vm, 2)
        if "cut1" in dbg:
            a("s_endpgm")
            return
        tS = vB
        ldo_ = {"qkv": 2048, "resid": 1024, "relu": DFF * 2}[epi[0]]
        if epi[0] != "resid":
            a("v_and_b32 v8, 1, v4")
            a("v_lshrrev_b32 v9, 1, v4")
            a("v_lshlrev_b32 v8, 5, v8")
            a("v_lshl_add_u32 v8, v9, 4, v8")
            a(f"s_mov_b32 s{s_t0}, {ldo_}")
            a(f"v_mul_lo_u32 v14, v3, s{s_t0}")
            a("v_add_u32 v14, v14, v8")
            a("v_lshl_add_u32 v15, v3, 12, v8")
            a(f"s_mul_i32 s{s_a}, s{s_mw}, {ldo_}")
            a(f"s_lshl_b32 s{s_t1}, s{s_nw}, 1")
            a(f"s_add_u32 s{s_a}, s{s_a}, s{s_t1}")
            if epi[0] == "relu":
                a(f"s_add_u32 s{s_a}, s{s_a}, {WS_H1}")
            a(f"s_add_u32 s{s_b}, s{s_nw}, {16 * nW - 1024}")
            a(f"s_lshl_b32 s{s_b}, s{s_b}, 12")
            a(f"s_lshl_b32 s{s_t1}, s{s_mw}, 1")
            a(f"s_add_u32 s{s_b}, s{s_b}, s{s_t1}")
            a(f"s_add_u32 s{s_b}, s{s_b}, {WS_VT}")
        if ln:
            a("v_lshlrev_b32 v8, 2, v3")
            for j in range(2):
                a(f"v_add_u32 v9, s{48 + j}, v8")
                a(f"ds_write_b32 v9, v{vCS + 4 * j} offset:{L_CS}")
            a("s_waitcnt lgkmcnt(0)")
            a("s_barrier")
            a("v_lshlrev_b32 v8, 4, v4")
            a("v_lshlrev_b32 v9, 2, v3")
            for ct in range(CT):
                if orient[ct] == "W":
                    a(f"ds_read_b128 {vr(vCS + 4 * ct, 4)}, v8 offset:{L_CS + 64 * ct}")
                else:
                    a(f"ds_read_b32 v{vCS + 4 * ct}, v9 offset:{L_CS + 64 * ct}")
            a("v_lshlrev_b32 v8, 2, v4")
            a("v_sub_u32 v8, v3, v8")
            for rt in range(RT):
                q = vST + 8 * rt
                a(f"v_mov_b32 v{tS + 1}, 0")
                for r in range(4):
                    a(f"v_cmp_eq_u32 vcc, {r}, v8")
                    a.nop(2)
                    a(f"v_cndmask_b32 v{tS + 1}, v{tS + 1}, v{q + 4 + r}, vcc")
                for sw in ("v_permlane16_swap_b32", "v_permlane32_swap_b32"):
                    a(f"v_mov_b32 v{tS + 3}, v{tS + 1}")
                    a.nop(2)
                    a(f"{sw} v{tS + 1}, v{tS + 3}")
                    a.nop(2)
                    a(f"v_add_f32 v{tS + 1}, v{tS + 1}, v{tS + 3}")
                a(f"v_mov_b32 v{tS}, v{q}")
                a(f"v_mul_f32 v{tS}, 0x3b000000, v{tS}")
                a(f"v_mul_f32 v{tS + 1}, 0x3b000000, v{tS + 1}")
                a(f"v_fma_f32 v{tS + 2}, -v{tS}, v{tS}, v{tS + 1}")
                a(f"v_max_f32 v{tS + 2}, 0, v{tS + 2}")
                a(f"v_cvt_pk_bf16_f32 v{tS + 3}, v{tS}, v{tS + 2}")
                a.nop(1)
                a(f"v_lshlrev_b32 v{tS}, 16, v{tS + 3}")
                a(f"v_and_b32 v{tS + 2}, 0xffff0000, v{tS + 3}")
                a(f"v_add_f32 v{tS + 2}, 0x3727c5ac, v{tS + 2}")
                a(f"v_cvt_pk_bf16_f32 v{tS + 3}, v{tS + 2}, v{tS + 2}")
                a.nop(1)
                a(f"v_lshlrev_b32 v{tS + 2}, 16, v{tS + 3}")
                a(f"v_sqrt_f32 v{tS + 2}, v{tS + 2}")
                a.nop(1)
                a(f"v_cvt_pk_bf16_f32 v{tS + 3}, v{tS + 2}, v{tS + 2}")
                a.nop(1)
                a(f"v_lshlrev_b32 v{tS + 2}, 16, v{tS + 3}")
                a(f"v_rcp_f32 v{q}, v{tS + 2}")
                a.nop(1)
                a(f"v_mul_f32 v{q + 2}, -v{tS}, v{q}")
            if nX:
                a(f"s_lshl_b32 s{s_t0}, s{s_w}, 8")
                a("v_lshlrev_b32 v8, 2, v3")
                a(f"v_add_u32 v8, s{s_t0}, v8")
                for rt in range(RT):
                    q = vST + 8 * rt
                    a(f"ds_write_b32 v8, v{q} offset:{L_ST + 64 * rt}")
                    a(f"ds_write_b32 v8, v{q + 2} offset:{L_ST + 128 + 64 * rt}")
                a("v_lshlrev_b32 v8, 4, v4")
                a(f"v_add_u32 v8, s{s_t0}, v8")
                a("s_waitcnt lgkmcnt(0)")
                for rt in range(RT):
                    a(f"ds_read_b128 {vr(B_reg(1, 2 * rt), 4)}, v8 offset:{L_ST + 64 * rt}")
                    a(f"ds_read_b128 {vr(B_reg(1, 2 * rt + 1), 4)}, v8 offset:{L_ST + 128 + 64 * rt}")
                a("s_waitcnt lgkmcnt(0)")
            a("s_waitcnt lgkmcnt(0)")
            for rt in range(RT):
                q = vST + 8 * rt
                for ct in range(CT):
                    cr = C_reg(rt, ct)
                    cs = vCS + 4 * ct
                    for i in (0, 2):
                        if orient[ct] == "W":
                            a(f"v_pk_mul_f32 v[8:9], {vr(cs + i, 2)}, {vr(q + 2, 2)} op_sel_hi:[1,0]")
                            a(f"v_pk_fma_f32 {vr(cr + i, 2)}, {vr(cr + i, 2)}, {vr(q, 2)}, v[8:9] op_sel_hi:[1,0,1]")
                        else:
                            a(f"v_pk_mul_f32 v[8:9], {vr(B_reg(1, 2 * rt + 1) + i, 2)}, {vr(cs, 2)} op_sel_hi:[1,0]")
                            a(f"v_pk_fma_f32 {vr(cr + i, 2)}, {vr(cr + i, 2)}, {vr(B_reg(1, 2 * rt) + i, 2)}, v[8:9]")
        if "cut2" in dbg:
            a("s_endpgm")
            return
        ldo = {"qkv": 2048, "resid": 1024, "relu": DFF * 2}[epi[0]]
        for rt in range(RT):
            for ct in range(CT):
                cr = C_reg(rt, ct)
                if epi[0] == "relu":
                    for i in range(4):
                        a(f"v_max_f32 v{cr + i}, 0, v{cr + i}")
        pairs = []
        for rt in range(RT):
            for ct in range(0, nW, 2):
                pairs.append((C_reg(rt, ct), C_reg(rt, ct + 1), "W", rt, ct))
        for ct in range(nW, CT):
            pairs.append((C_reg(0, ct), C_reg(1, ct), "X", 0, ct))
        if epi[0] == "resid":
            a("s_waitcnt vmcnt(0)")
        for k, (r0, r1, kind, rt, ct) in enumerate(pairs):
            d = vB + 4 * (k % 6)
            a(f"v_cvt_pk_bf16_f32 v{d}, v{r0}, v{r0 + 1}")
            a(f"v_cvt_pk_bf16_f32 v{d + 1}, v{r0 + 2}, v{r0 + 3}")
            a(f"v_cvt_pk_bf16_f32 v{d + 2}, v{r1}, v{r1 + 1}")
            a(f"v_cvt_pk_bf16_f32 v{d + 3}, v{r1 + 2}, v{r1 + 3}")
            if kind == "W":
                a(f"s_add_u32 s{s_t0}, s{s_a}, {16 * rt * ldo + 32 * ct}")
            else:
                a(f"s_add_u32 s{s_t0}, s{s_b}, {16 * (ct - nW) * 4096}")
            a.nop(1)
            a(f"v_permlane16_swap_b32 v{d}, v{d + 2}")
            a(f"v_permlane16_swap_b32 v{d + 1}, v{d + 3}")
            if epi[0] == "resid":
                a.nop(1)
                for i in range(4):
                    a(f"v_lshlrev_b32 v8, 16, v{d + i}")
                    a(f"v_and_b32 v9, 0xffff0000, v{d + i}")
                    a(f"v_lshlrev_b32 v10, 16, v{vRS + 4 * k + i}")
                    a(f"v_and_b32 v11, 0xffff0000, v{vRS + 4 * k + i}")
                    a("v_pk_add_f32 v[8:9], v[8:9], v[10:11]")
                    a(f"v_cvt_pk_bf16_f32 v{d + i}, v8, v9")
                a(f"s_add_u32 s{s_t0}, s{s_t0}, {epi[2][1]}")
            if epi[0] == "relu":
                a(f"s_add_u32 s{s_t1}, s{s_nw}, {16 * ct}")
                a(f"s_cmp_ge_u32 s{s_t1}, {N}")
                a(f"s_cbranch_scc1 {name}_skip{tag}_{k}")
            if kind == "W":
                a(f"buffer_store_dwordx4 {vr(d, 4)}, v14, s[{sSO}:{sSO + 3}], s{s_t0} offen")
            else:
                a(f"buffer_store_dwordx4 {vr(d, 4)}, v15, s[{sSR}:{sSR + 3}], s{s_t0} offen")
            if epi[0] == "relu":
                a.label(f"{name}_skip{tag}_{k}")
        stamp(a, vm, 4)
        a("s_endpgm")

    if epi[0] == "qkv":
        variants = {}
        for tn in range(tiles_n):
            o = tuple("W" if (tn * BN + 16 * ct) < 1024 else "X" for ct in range(CT))
            variants.setdefault(o, []).append(tn)
    else:
        variants = {tuple("W" for _ in range(CT)): list(range(tiles_n))}
    keys = list(variants.keys())
    for vi, o in enumerate(keys):
        if vi < len(keys) - 1:
            a(f"s_cmp_gt_u32 s{s_n0}, {max(variants[o]) * BN}")
            a(f"s_cbranch_scc1 {name}_var{vi + 1}")
        compute(o, vi)
        if vi < len(keys) - 1:
            a.label(f"{name}_var{vi + 1}")

    a.label(f"{name}_loader")
    if "cut0" in dbg:
        a("s_endpgm")
    a(f"s_sub_u32 s{s_w}, s{s_w}, 4")
    if "prioL" in OPT:
        a("s_setprio 3")
    a("v_lshrrev_b32 v5, 3, v2")
    a("v_and_b32 v6, 7, v2")
    a(f"s_mov_b32 s{s_t0}, {lda}")
    a("v_lshrrev_b32 v8, 1, v5")
    a("v_xor_b32 v8, v8, v6")
    a(f"v_mul_lo_u32 v7, v5, s{s_t0}")
    for i in range(nAi):
        if i & 1:
            a("v_xor_b32 v9, 4, v8")
            a(f"v_lshl_add_u32 v{16 + i}, v9, 4, v7")
        else:
            a(f"v_lshl_add_u32 v{16 + i}, v8, 4, v7")
        if i:
            a(f"v_add_u32 v{16 + i}, {8 * i * lda - 1024 * i}, v{16 + i}")
    a("v_lshrrev_b32 v6, 2, v2")
    a(f"s_mov_b32 s{s_t0}, {ldw}")
    a(f"v_mul_lo_u32 v6, v6, s{s_t0}")
    a("v_lshrrev_b32 v9, 5, v2")
    a("v_lshlrev_b32 v9, 1, v9")
    a("v_and_b32 v8, 3, v2")
    a("v_xor_b32 v9, v9, v8")
    a("v_lshl_add_u32 v20, v9, 4, v6")
    for P in range(1, NP):
        a(f"v_add_u32 v{20 + P}, {64 * P}, v20")
    a(f"s_mul_i32 s{s_t1}, s{s_w}, {BM // 4}")
    a(f"s_add_u32 s{s_a}, s{s_t1}, s{s_m0}")
    a(f"s_mul_i32 s{s_a}, s{s_a}, {lda}")
    a(f"s_add_u32 s{s_a}, s{s_a}, {a_src[1]}")
    a(f"s_mul_i32 s{s_wm}, s{s_w}, {APART // 4}")
    a(f"s_add_u32 s{s_wm}, s{s_wm}, {RING}")
    a(f"s_mul_i32 s{s_b}, s{s_w}, {16 * ldw}")
    a(f"s_lshl_b32 s{s_t2}, s{s_n0}, 1")
    a(f"s_add_u32 s{s_b}, s{s_b}, s{s_t2}")
    a(f"s_lshl_b32 s{s_wn}, s{s_w}, 10")
    a(f"s_add_u32 s{s_wn}, s{s_wn}, {RING + APART}")
    a(f"s_mov_b32 s{s_lb}, 0")
    a(f"s_mov_b32 s{s_bi}, 0")
    a("s_waitcnt lgkmcnt(0)")
    srd(a, sSA, 4, a_src[1] + a_bytes, 0)
    srd(a, sSW, 6, w_bytes, 0)

    def issue():
        a(f"s_add_u32 m0, s{s_wm}, s{s_lb}")
        a(f"s_add_u32 s{s_t0}, s{s_wn}, s{s_lb}")
        for i in range(nAi):
            if "noA" in dbg:
                a("s_nop 0")
                continue
            a(f"buffer_load_dwordx4 v{16 + i}, s[{sSA}:{sSA + 3}], s{s_a} offen offset:{1024 * i} lds")
        for P in range(NP):
            a(f"s_add_u32 m0, s{s_t0}, {P * PSTR}")
            if P == 0:
                a(f"s_add_u32 s{s_a}, s{s_a}, {KC * 2}")
            else:
                a("s_nop 0")
            if "noW" in dbg:
                continue
            a(f"buffer_load_dwordx4 v{20 + P}, s[{sSW}:{sSW + 3}], s{s_b} offen lds")
        a(f"s_add_u32 s{s_b}, s{s_b}, {KC * ldw}")
        a(f"s_add_u32 s{s_lb}, s{s_lb}, {BUFB}")
        a(f"s_add_u32 s{s_bi}, s{s_bi}, 1")
        a(f"s_cmp_eq_u32 s{s_bi}, {NB}")
        a(f"s_cselect_b32 s{s_lb}, 0, s{s_lb}")
        a(f"s_cselect_b32 s{s_bi}, 0, s{s_bi}")

    vml = VM(a)
    st = {"n": 0}

    def issue_upto(j):
        while st["n"] <= min(j, C - 1):
            issue()
            for _ in range(nld):
                vml.issue(st["n"])
            st["n"] += 1

    pfdone = {"d": pf is None}

    def prefetch():
        pfdone["d"] = True
        ka, nbytes = pf
        nsl = ntiles // 8
        per_wave = -(-nbytes // (nsl * 4 * 1024))
        a(f"s_load_dwordx2 s[36:37], s[0:1], {ka}")
        a(f"s_lshr_b32 s{s_t0}, s2, 3")
        a(f"s_lshl_b32 s{s_t0}, s{s_t0}, 2")
        a(f"s_add_u32 s{s_t0}, s{s_t0}, s{s_w}")
        a(f"s_mul_i32 s{s_t0}, s{s_t0}, {per_wave * 1024}")
        a("v_lshlrev_b32 v28, 4, v2")
        a("s_waitcnt lgkmcnt(0)")
        srd(a, sSO, 36, nbytes, 0)
        for i in range(per_wave):
            if i % 4 == 0 and i:
                a(f"s_add_u32 s{s_t0}, s{s_t0}, 4096")
            a(f"buffer_load_dwordx4 v[24:27], v28, s[{sSO}:{sSO + 3}], s{s_t0} offen offset:{(i % 4) * 1024}")
            vml.issue("pf")

    g0, g1 = (2, 3) if "deep3" in OPT else ((0, 2) if "deep1" in OPT else (1, 2))
    issue_upto(min(g0, NB - 2))
    for c in range(C):
        vml.wait([c])
        a("s_barrier")
        issue_upto(min(g1 * (c + 1) + g0, c + NB - 1))
        if st["n"] == C and not pfdone["d"]:
            prefetch()
    a("s_barrier")
    a.label(f"{name}_end")
    a("s_endpgm")
    return a.lines, descriptor(name, 256 if gen.STAMPS else max(nvgpr, 32), 56), lds_bytes
```

```python
import gen
from gen import (Asm, VM, srd, header, descriptor, vr, S, D, DFF, WS_QK, WS_VT, WS_O, WS_H, WS_H1,
                 KA_X, KA_WS, KA_OUT, stamp)


DFFP = 1408


def gemm5(name, *, a_src, lda, a_bytes, w_ka, ldw, w_bytes, N, nks, BM, BN, WGM, WGN, NB, ln, epi,
          tiles_n, ntiles, STG=1, pf=None, pf0=False, dbg=()):
    a = Asm()
    KC, KS = 64, 2
    assert nks % KS == 0
    C = nks // KS
    assert NB <= C + 1
    RT = BM // WGM // 16
    CT = BN // WGN // 16
    NP = BN // 32
    RB = 128
    APART = BM * RB
    PSTR = KC * 64
    WPART = NP * PSTR
    BUFB = APART + WPART
    L_ST = 0
    L_CS = 1024
    RING = 2048
    lds_bytes = RING + NB * BUFB
    assert lds_bytes <= 160 * 1024, lds_bytes
    nAi = APART // 1024 // 4
    assert nAi <= 4
    nld = nAi + NP

    sSA, sSW, sSO, sSR = 8, 12, 16, 20
    s_w, s_m0, s_n0, s_t0, s_t1, s_t2, s_wm, s_wn, s_mw, s_nw = 24, 25, 26, 27, 28, 29, 30, 31, 32, 33
    s_a, s_b, s_lb, s_bi, s_cnt, s_rot = 42, 43, 44, 45, 46, 47

    header(a, name)
    a(f"s_cmp_ge_u32 s2, {ntiles}")
    a(f"s_cbranch_scc1 {name}_end")
    a(f"s_load_dwordx2 s[4:5], s[0:1], {a_src[0]}")
    a(f"s_load_dwordx2 s[6:7], s[0:1], {w_ka}")
    a(f"s_load_dwordx2 s[34:35], s[0:1], {KA_WS}")
    if epi[0] == "resid":
        a(f"s_load_dwordx2 s[36:37], s[0:1], {KA_OUT}")
        a(f"s_load_dwordx2 s[38:39], s[0:1], {KA_X}")
    a("v_lshrrev_b32 v1, 6, v0")
    a("v_and_b32 v2, 63, v0")
    per = (ntiles // tiles_n) // 8
    a(f"s_lshr_b32 s{s_t0}, s2, 3")
    if tiles_n & (tiles_n - 1) == 0:
        a(f"s_lshr_b32 s{s_t1}, s{s_t0}, {tiles_n.bit_length() - 1}")
        a(f"s_and_b32 s{s_t2}, s{s_t0}, {tiles_n - 1}")
    else:
        magic = (1 << 32) // tiles_n + 1
        a(f"s_mov_b32 s{s_t2}, {magic}")
        a(f"s_mul_hi_u32 s{s_t1}, s{s_t0}, s{s_t2}")
        a(f"s_mul_i32 s{s_t2}, s{s_t1}, {tiles_n}")
        a(f"s_sub_u32 s{s_t2}, s{s_t0}, s{s_t2}")
    a(f"s_and_b32 s{s_t0}, s2, 7")
    a(f"s_mul_i32 s{s_t0}, s{s_t0}, {per}")
    a(f"s_add_u32 s{s_t1}, s{s_t1}, s{s_t0}")
    a(f"v_readfirstlane_b32 s{s_w}, v1")
    a(f"s_mul_i32 s{s_m0}, s{s_t1}, {BM}")
    a(f"s_mul_i32 s{s_n0}, s{s_t2}, {BN}")
    a("v_and_b32 v3, 15, v2")
    a("v_lshrrev_b32 v4, 4, v2")
    a(f"s_cmp_ge_u32 s{s_w}, 4")
    a(f"s_cbranch_scc1 {name}_loader")

    import os
    OPT = os.environ.get("OPT", "")
    vm = VM(a)
    if "prioC" in OPT:
        a("s_setprio 2")
    if WGN == 1:
        a(f"s_mul_i32 s{s_mw}, s{s_w}, {16 * RT}")
        a(f"s_mul_i32 s{s_t0}, s{s_w}, {16 * RT * RB}")
        a(f"s_mov_b32 s{s_nw}, s{s_n0}")
        a(f"s_mov_b32 s{s_t1}, {RING}")
    else:
        a(f"s_lshr_b32 s{s_wm}, s{s_w}, 1")
        a(f"s_and_b32 s{s_wn}, s{s_w}, 1")
        a(f"s_mul_i32 s{s_mw}, s{s_wm}, {16 * RT}")
        a(f"s_mul_i32 s{s_t0}, s{s_wm}, {16 * RT * RB}")
        a(f"s_mul_i32 s{s_nw}, s{s_wn}, {16 * CT}")
        a(f"s_add_u32 s{s_nw}, s{s_nw}, s{s_n0}")
        a(f"s_mul_i32 s{s_t1}, s{s_wn}, {PSTR * (CT // 2)}")
        a(f"s_add_u32 s{s_t1}, s{s_t1}, {RING}")
    a(f"s_add_u32 s{s_mw}, s{s_mw}, s{s_m0}")
    a(f"s_add_u32 s{s_t0}, s{s_t0}, {RING}")
    a("v_and_b32 v8, 3, v2")
    a("v_bfe_u32 v9, v2, 2, 2")
    a("v_lshl_add_u32 v9, v4, 3, v9")
    a("v_lshlrev_b32 v9, 6, v9")
    a("v_lshl_add_u32 v9, v8, 3, v9")
    a(f"v_add_u32 v9, s{s_t1}, v9")
    a("v_and_b32 v10, 1, v4")
    a("v_lshlrev_b32 v10, 5, v10")
    a("v_xor_b32 v11, 32, v10")
    a("v_add_u32 v10, v9, v10")
    a("v_add_u32 v11, v9, v11")
    a("v_lshlrev_b32 v9, 7, v3")
    a(f"v_add_u32 v9, s{s_t0}, v9")
    a("v_lshrrev_b32 v8, 1, v3")
    a("v_xor_b32 v12, v4, v8")
    a("v_xor_b32 v13, 4, v12")
    a("v_lshl_add_u32 v12, v12, 4, v9")
    a("v_lshl_add_u32 v13, v13, 4, v9")
    if ln:
        a(f"s_add_u32 s{s_t0}, s{s_w}, 4")
        a(f"s_cmp_lt_u32 s{s_w}, {CT - 4}")
        a(f"s_cselect_b32 s{s_t1}, s{s_t0}, s{s_w}")
        for j, sc in enumerate((s_w, s_t1)):
            a(f"s_lshr_b32 s{s_t0}, s{sc}, 1")
            a(f"s_mul_i32 s{s_t0}, s{s_t0}, {PSTR}")
            a(f"s_and_b32 s{s_t2}, s{sc}, 1")
            a(f"s_cmp_eq_u32 s{s_t2}, 0")
            a("s_cselect_b64 vcc, -1, 0")
            a(f"v_cndmask_b32 v{14 + j}, v11, v10, vcc")
            a(f"v_add_u32 v{14 + j}, s{s_t0}, v{14 + j}")
            a(f"s_lshl_b32 s{48 + j}, s{sc}, 6")

    vA = 16
    vB = vA + 2 * STG * RT * 4
    vC = vB + 2 * STG * CT * 4
    vCS = vC + RT * CT * 4
    nCS = CT * 4 if ln else 0
    vST = vCS + nCS
    nST = 8 * RT if ln else 0
    vON = vST + nST
    vRS = vON + (4 if ln else 0)
    rows = 16 * RT
    nvgpr = vRS + (16 if epi[0] == "resid" or pf0 else 0)
    assert nvgpr <= 256

    def A_reg(s, rt, k=0):
        return vA + ((s * STG + k) * RT + rt) * 4

    def B_reg(s, ct, k=0):
        return vB + ((s * STG + k) * CT + ct) * 4

    def C_reg(rt, ct):
        return vC + (rt * CT + ct) * 4

    for i in range(RT * CT * 4 + nCS + nST):
        a(f"v_mov_b32 v{vC + i}, 0")
    if ln:
        a("s_mov_b32 s41, 0x3f803f80")
        for i in range(4):
            a(f"v_mov_b32 v{vON + i}, s41")
    a(f"s_mov_b32 s{s_bi}, 0")
    a(f"s_mov_b32 s{s_cnt}, {C // STG}")
    a(f"s_mov_b32 s40, {-(NB - 1) * BUFB}")
    a("s_waitcnt lgkmcnt(0)")
    stamp(a, vm, 0)
    if epi[0] == "qkv":
        srd(a, sSO, 34, WS_QK + S * 1024 * 2, 0)
        srd(a, sSR, 34, WS_VT + 512 * S * 2, 0)
    elif epi[0] == "resid":
        rs_pair = {KA_X: 38, KA_WS: 34, KA_OUT: 36}
        srd(a, sSR, rs_pair[epi[1][0]], epi[1][1] + S * D * 2, 0)
        srd(a, sSO, rs_pair[epi[2][0]], epi[2][1] + S * D * 2, 0)
        a("v_and_b32 v8, 1, v4")
        a("v_lshrrev_b32 v9, 1, v4")
        a("v_lshlrev_b32 v8, 5, v8")
        a("v_lshl_add_u32 v8, v9, 4, v8")
        a("v_lshl_add_u32 v14, v3, 10, v8")
        a(f"s_lshl_b32 s{s_t0}, s{s_mw}, 10")
        a(f"s_lshl_b32 s{s_t1}, s{s_nw}, 1")
        a(f"s_add_u32 s{s_a}, s{s_t0}, s{s_t1}")
        a(f"s_add_u32 s{s_t0}, s{s_a}, {epi[1][1]}")
        a(f"s_add_u32 s{s_t1}, s{s_t0}, {16 * 1024}")
        a(f"buffer_load_dwordx4 {vr(vRS, 4)}, v14, s[{sSR}:{sSR + 3}], s{s_t0} offen")
        a(f"buffer_load_dwordx4 {vr(vRS + 4, 4)}, v14, s[{sSR}:{sSR + 3}], s{s_t1} offen")
    elif epi[0] == "relu":
        srd(a, sSO, 34, WS_H1 + S * DFFP * 2, 0)

    if pf0:
        nsl = ntiles // 8
        per_wave = -(-w_bytes // (nsl * 4 * 1024))
        srd(a, sSW, 6, w_bytes, 0)
        a(f"s_lshr_b32 s{s_t0}, s2, 3")
        a(f"s_lshl_b32 s{s_t0}, s{s_t0}, 2")
        a(f"s_add_u32 s{s_t0}, s{s_t0}, s{s_w}")
        a(f"s_mul_i32 s{s_t0}, s{s_t0}, {per_wave * 1024}")
        a("v_lshlrev_b32 v8, 4, v2")
        for i in range(per_wave):
            if i % 4 == 0 and i:
                a(f"s_add_u32 s{s_t0}, s{s_t0}, 4096")
            a(f"buffer_load_dwordx4 {vr(vRS, 4)}, v8, s[{sSW}:{sSW + 3}], s{s_t0} offen offset:{(i % 4) * 1024}")

    def rd(ks0, s):
        ops = []
        for k in range(STG):
            ks = ks0 + k
            for rt in range(RT):
                ops.append(f"ds_read_b128 {vr(A_reg(s, rt, k), 4)}, v{12 + ks} offset:{16 * rt * RB}")
            for ct in range(CT):
                o = APART + (ct // 2) * PSTR + ks * 2048
                r = B_reg(s, ct, k)
                ops.append(f"ds_read_b64_tr_b16 {vr(r, 2)}, v{10 + (ct & 1)} offset:{o}")
                ops.append(f"ds_read_b64_tr_b16 {vr(r + 2, 2)}, v{10 + (ct & 1)} offset:{o + 256}")
            if ln:
                ops.insert(8, "s_waitcnt lgkmcnt(6)")
                for j in range(2):
                    r = vCS + 8 + (s * 2 + j) * 4
                    ops.append(f"ds_read_b64_tr_b16 {vr(r, 2)}, v{14 + j} offset:{APART + ks * 2048}")
                    ops.append(f"ds_read_b64_tr_b16 {vr(r + 2, 2)}, v{14 + j} offset:{APART + ks * 2048 + 256}")
        return ops

    def mm(d, x, y):
        return f"v_mfma_f32_16x16x32_bf16 {vr(d, 4)}, {vr(x, 4)}, {vr(y, 4)}, {vr(d, 4)}"

    def stage(orient, s, nxt):
        mf = []
        for k in range(STG):
            for ct in range(CT):
                br = B_reg(s, ct, k)
                for rt in range(RT):
                    cr, ar = C_reg(rt, ct), A_reg(s, rt, k)
                    mf.append(mm(cr, br, ar) if orient[ct] == "W" else mm(cr, ar, br))
                if ln and 2 <= ct < 4:
                    j = ct - 2
                    mf.append(mm(vCS + 4 * j, vON, vCS + 8 + (s * 2 + j) * 4))
                if ln and ct < RT:
                    ar = A_reg(s, ct, k)
                    mf.append(mm(vST + 8 * ct, vON, ar))
                    mf.append(mm(vST + 8 * ct + 4, ar, ar))
        nm = len(mf)
        for i, m in enumerate(mf):
            for op in nxt[i * len(nxt) // nm:(i + 1) * len(nxt) // nm]:
                a(op)
            a(m)

    def rotate():
        a(f"s_add_u32 s{s_bi}, s{s_bi}, 1")
        a(f"s_cmp_eq_u32 s{s_bi}, {NB}")
        a(f"s_cselect_b32 s{s_rot}, s40, {BUFB}")
        a(f"s_cselect_b32 s{s_bi}, 0, s{s_bi}")

    def compute(orient, tag):
        nW = sum(1 for o in orient if o == "W")
        nX = CT - nW
        if "cut0" in dbg:
            a("s_endpgm")
            return
        a("s_barrier")
        stamp(a, vm, 1)
        for op in rd(0, 0):
            a(op)
        bi = 0
        roll = "roll" in OPT
        if roll:
            a.label(f"{name}_loop{tag}")
        for it in range(1 if roll else C // STG):
            for half in (0, 1):
                newchunk = STG == 2 or half == 1
                if roll and newchunk:
                    rotate()
                if roll and half == 1:
                    a(f"s_sub_u32 s{s_cnt}, s{s_cnt}, 1")
                a("s_waitcnt lgkmcnt(0)")
                if newchunk:
                    a("s_barrier")
                    bi += 1
                    rot = BUFB
                    if bi == NB:
                        bi = 0
                        rot = -(NB - 1) * BUFB
                    for r in (10, 11, 12, 13) + ((14, 15) if ln else ()):
                        if roll:
                            a(f"v_add_u32 v{r}, s{s_rot}, v{r}")
                        else:
                            a(f"v_add_u32 v{r}, {rot & 0xffffffff}, v{r}")
                if "nocomp" not in dbg:
                    stage(orient, half, rd(0 if newchunk else 1, 1 - half))
        if roll:
            a(f"s_cmp_lg_u32 s{s_cnt}, 0")
            a(f"s_cbranch_scc1 {name}_loop{tag}")
        a("s_waitcnt lgkmcnt(0)")
        a.nop(8)
        stamp(a, vm, 2)
        if "cut1" in dbg:
            a("s_endpgm")
            return
        tS = vB
        ldo_ = {"qkv": 2048, "resid": 1024, "relu": DFFP * 2}[epi[0]]
        if epi[0] != "resid":
            a("v_and_b32 v8, 1, v4")
            a("v_lshrrev_b32 v9, 1, v4")
            a("v_lshlrev_b32 v8, 5, v8")
            a("v_lshl_add_u32 v8, v9, 4, v8")
            a(f"s_mov_b32 s{s_t0}, {ldo_}")
            a(f"v_mul_lo_u32 v14, v3, s{s_t0}")
            a("v_add_u32 v14, v14, v8")
            a("v_lshl_add_u32 v15, v3, 12, v8")
            a(f"s_mul_i32 s{s_a}, s{s_mw}, {ldo_}")
            a(f"s_lshl_b32 s{s_t1}, s{s_nw}, 1")
            a(f"s_add_u32 s{s_a}, s{s_a}, s{s_t1}")
            if epi[0] == "relu":
                a(f"s_add_u32 s{s_a}, s{s_a}, {WS_H1}")
            a(f"s_add_u32 s{s_b}, s{s_nw}, {16 * nW - 1024}")
            a(f"s_lshl_b32 s{s_b}, s{s_b}, 12")
            a(f"s_lshl_b32 s{s_t1}, s{s_mw}, 1")
            a(f"s_add_u32 s{s_b}, s{s_b}, s{s_t1}")
            a(f"s_add_u32 s{s_b}, s{s_b}, {WS_VT}")
        if ln:
            a("v_lshlrev_b32 v8, 2, v3")
            for j in range(2):
                a(f"v_add_u32 v9, s{48 + j}, v8")
                a(f"ds_write_b32 v9, v{vCS + 4 * j} offset:{L_CS}")
            a("s_waitcnt lgkmcnt(0)")
            a("s_barrier")
            a("v_lshlrev_b32 v8, 4, v4")
            a("v_lshlrev_b32 v9, 2, v3")
            for ct in range(CT):
                if orient[ct] == "W":
                    a(f"ds_read_b128 {vr(vCS + 4 * ct, 4)}, v8 offset:{L_CS + 64 * ct}")
                else:
                    a(f"ds_read_b32 v{vCS + 4 * ct}, v9 offset:{L_CS + 64 * ct}")
            a("v_lshlrev_b32 v8, 2, v4")
            a("v_sub_u32 v8, v3, v8")
            for rt in range(RT):
                q = vST + 8 * rt
                a(f"v_mov_b32 v{tS + 1}, 0")
                for r in range(4):
                    a(f"v_cmp_eq_u32 vcc, {r}, v8")
                    a.nop(2)
                    a(f"v_cndmask_b32 v{tS + 1}, v{tS + 1}, v{q + 4 + r}, vcc")
                for sw in ("v_permlane16_swap_b32", "v_permlane32_swap_b32"):
                    a(f"v_mov_b32 v{tS + 3}, v{tS + 1}")
                    a.nop(2)
                    a(f"{sw} v{tS + 1}, v{tS + 3}")
                    a.nop(2)
                    a(f"v_add_f32 v{tS + 1}, v{tS + 1}, v{tS + 3}")
                a(f"v_mov_b32 v{tS}, v{q}")
                a(f"v_mul_f32 v{tS}, 0x3b000000, v{tS}")
                a(f"v_mul_f32 v{tS + 1}, 0x3b000000, v{tS + 1}")
                a(f"v_fma_f32 v{tS + 2}, -v{tS}, v{tS}, v{tS + 1}")
                a(f"v_max_f32 v{tS + 2}, 0, v{tS + 2}")
                a(f"v_cvt_pk_bf16_f32 v{tS + 3}, v{tS}, v{tS + 2}")
                a.nop(1)
                a(f"v_lshlrev_b32 v{tS}, 16, v{tS + 3}")
                a(f"v_and_b32 v{tS + 2}, 0xffff0000, v{tS + 3}")
                a(f"v_add_f32 v{tS + 2}, 0x3727c5ac, v{tS + 2}")
                a(f"v_cvt_pk_bf16_f32 v{tS + 3}, v{tS + 2}, v{tS + 2}")
                a.nop(1)
                a(f"v_lshlrev_b32 v{tS + 2}, 16, v{tS + 3}")
                a(f"v_sqrt_f32 v{tS + 2}, v{tS + 2}")
                a.nop(1)
                a(f"v_cvt_pk_bf16_f32 v{tS + 3}, v{tS + 2}, v{tS + 2}")
                a.nop(1)
                a(f"v_lshlrev_b32 v{tS + 2}, 16, v{tS + 3}")
                a(f"v_rcp_f32 v{q}, v{tS + 2}")
                a.nop(1)
                a(f"v_mul_f32 v{q + 2}, -v{tS}, v{q}")
            if nX:
                a(f"s_lshl_b32 s{s_t0}, s{s_w}, 8")
                a("v_lshlrev_b32 v8, 2, v3")
                a(f"v_add_u32 v8, s{s_t0}, v8")
                for rt in range(RT):
                    q = vST + 8 * rt
                    a(f"ds_write_b32 v8, v{q} offset:{L_ST + 64 * rt}")
                    a(f"ds_write_b32 v8, v{q + 2} offset:{L_ST + 128 + 64 * rt}")
                a("v_lshlrev_b32 v8, 4, v4")
                a(f"v_add_u32 v8, s{s_t0}, v8")
                a("s_waitcnt lgkmcnt(0)")
                for rt in range(RT):
                    a(f"ds_read_b128 {vr(B_reg(1, 2 * rt), 4)}, v8 offset:{L_ST + 64 * rt}")
                    a(f"ds_read_b128 {vr(B_reg(1, 2 * rt + 1), 4)}, v8 offset:{L_ST + 128 + 64 * rt}")
                a("s_waitcnt lgkmcnt(0)")
            a("s_waitcnt lgkmcnt(0)")
            for rt in range(RT):
                q = vST + 8 * rt
                for ct in range(CT):
                    cr = C_reg(rt, ct)
                    cs = vCS + 4 * ct
                    for i in (0, 2):
                        if orient[ct] == "W":
                            a(f"v_pk_mul_f32 v[8:9], {vr(cs + i, 2)}, {vr(q + 2, 2)} op_sel_hi:[1,0]")
                            a(f"v_pk_fma_f32 {vr(cr + i, 2)}, {vr(cr + i, 2)}, {vr(q, 2)}, v[8:9] op_sel_hi:[1,0,1]")
                        else:
                            a(f"v_pk_mul_f32 v[8:9], {vr(B_reg(1, 2 * rt + 1) + i, 2)}, {vr(cs, 2)} op_sel_hi:[1,0]")
                            a(f"v_pk_fma_f32 {vr(cr + i, 2)}, {vr(cr + i, 2)}, {vr(B_reg(1, 2 * rt) + i, 2)}, v[8:9]")
        if "cut2" in dbg:
            a("s_endpgm")
            return
        ldo = {"qkv": 2048, "resid": 1024, "relu": DFFP * 2}[epi[0]]
        for rt in range(RT):
            for ct in range(CT):
                cr = C_reg(rt, ct)
                if epi[0] == "relu":
                    for i in range(4):
                        a(f"v_max_f32 v{cr + i}, 0, v{cr + i}")
        pairs = []
        for rt in range(RT):
            for ct in range(0, nW, 2):
                pairs.append((C_reg(rt, ct), C_reg(rt, ct + 1), "W", rt, ct))
        for ct in range(nW, CT):
            pairs.append((C_reg(0, ct), C_reg(1, ct), "X", 0, ct))
        if epi[0] == "resid":
            a("s_waitcnt vmcnt(0)")
        for k, (r0, r1, kind, rt, ct) in enumerate(pairs):
            d = vB + 4 * (k % 6)
            a(f"v_cvt_pk_bf16_f32 v{d}, v{r0}, v{r0 + 1}")
            a(f"v_cvt_pk_bf16_f32 v{d + 1}, v{r0 + 2}, v{r0 + 3}")
            a(f"v_cvt_pk_bf16_f32 v{d + 2}, v{r1}, v{r1 + 1}")
            a(f"v_cvt_pk_bf16_f32 v{d + 3}, v{r1 + 2}, v{r1 + 3}")
            if kind == "W":
                a(f"s_add_u32 s{s_t0}, s{s_a}, {16 * rt * ldo + 32 * ct}")
            else:
                a(f"s_add_u32 s{s_t0}, s{s_b}, {16 * (ct - nW) * 4096}")
            a.nop(1)
            a(f"v_permlane16_swap_b32 v{d}, v{d + 2}")
            a(f"v_permlane16_swap_b32 v{d + 1}, v{d + 3}")
            if epi[0] == "resid":
                a.nop(1)
                for i in range(4):
                    a(f"v_lshlrev_b32 v8, 16, v{d + i}")
                    a(f"v_and_b32 v9, 0xffff0000, v{d + i}")
                    a(f"v_lshlrev_b32 v10, 16, v{vRS + 4 * k + i}")
                    a(f"v_and_b32 v11, 0xffff0000, v{vRS + 4 * k + i}")
                    a("v_pk_add_f32 v[8:9], v[8:9], v[10:11]")
                    a(f"v_cvt_pk_bf16_f32 v{d + i}, v8, v9")
                a(f"s_add_u32 s{s_t0}, s{s_t0}, {epi[2][1]}")
            if epi[0] == "relu":
                a(f"s_add_u32 s{s_t1}, s{s_nw}, {16 * ct}")
                a(f"s_cmp_ge_u32 s{s_t1}, {DFFP}")
                a(f"s_cbranch_scc1 {name}_skip{tag}_{k}")
                a(f"s_cmp_lt_u32 s{s_t1}, {N}")
                a(f"s_cbranch_scc1 {name}_nz{tag}_{k}")
                for i in range(4):
                    a(f"v_mov_b32 v{d + i}, 0")
                a.label(f"{name}_nz{tag}_{k}")
            if kind == "W":
                a(f"buffer_store_dwordx4 {vr(d, 4)}, v14, s[{sSO}:{sSO + 3}], s{s_t0} offen")
            else:
                a(f"buffer_store_dwordx4 {vr(d, 4)}, v15, s[{sSR}:{sSR + 3}], s{s_t0} offen")
            if epi[0] == "relu":
                a.label(f"{name}_skip{tag}_{k}")
        stamp(a, vm, 4)
        a("s_endpgm")

    if epi[0] == "qkv":
        variants = {}
        for tn in range(tiles_n):
            o = tuple("W" if (tn * BN + 16 * ct) < 1024 else "X" for ct in range(CT))
            variants.setdefault(o, []).append(tn)
    else:
        variants = {tuple("W" for _ in range(CT)): list(range(tiles_n))}
    keys = list(variants.keys())
    for vi, o in enumerate(keys):
        if vi < len(keys) - 1:
            a(f"s_cmp_gt_u32 s{s_n0}, {max(variants[o]) * BN}")
            a(f"s_cbranch_scc1 {name}_var{vi + 1}")
        compute(o, vi)
        if vi < len(keys) - 1:
            a.label(f"{name}_var{vi + 1}")

    a.label(f"{name}_loader")
    if "cut0" in dbg:
        a("s_endpgm")
    a(f"s_sub_u32 s{s_w}, s{s_w}, 4")
    if "prioL" in OPT:
        a("s_setprio 3")
    a("v_lshrrev_b32 v5, 3, v2")
    a("v_and_b32 v6, 7, v2")
    a(f"s_mov_b32 s{s_t0}, {lda}")
    a("v_lshrrev_b32 v8, 1, v5")
    a("v_xor_b32 v8, v8, v6")
    a(f"v_mul_lo_u32 v7, v5, s{s_t0}")
    for i in range(nAi):
        if i & 1:
            a("v_xor_b32 v9, 4, v8")
            a(f"v_lshl_add_u32 v{16 + i}, v9, 4, v7")
        else:
            a(f"v_lshl_add_u32 v{16 + i}, v8, 4, v7")
        if i:
            a(f"v_add_u32 v{16 + i}, {8 * i * lda - 1024 * i}, v{16 + i}")
    a("v_lshrrev_b32 v6, 2, v2")
    a(f"s_mov_b32 s{s_t0}, {ldw}")
    a(f"v_mul_lo_u32 v6, v6, s{s_t0}")
    a("v_lshrrev_b32 v9, 5, v2")
    a("v_lshlrev_b32 v9, 1, v9")
    a("v_and_b32 v8, 3, v2")
    a("v_xor_b32 v9, v9, v8")
    a("v_lshl_add_u32 v20, v9, 4, v6")
    for P in range(1, NP):
        a(f"v_add_u32 v{20 + P}, {64 * P}, v20")
    a(f"s_mul_i32 s{s_t1}, s{s_w}, {BM // 4}")
    a(f"s_add_u32 s{s_a}, s{s_t1}, s{s_m0}")
    a(f"s_mul_i32 s{s_a}, s{s_a}, {lda}")
    a(f"s_add_u32 s{s_a}, s{s_a}, {a_src[1]}")
    a(f"s_mul_i32 s{s_wm}, s{s_w}, {APART // 4}")
    a(f"s_add_u32 s{s_wm}, s{s_wm}, {RING}")
    a(f"s_mul_i32 s{s_b}, s{s_w}, {16 * ldw}")
    a(f"s_lshl_b32 s{s_t2}, s{s_n0}, 1")
    a(f"s_add_u32 s{s_b}, s{s_b}, s{s_t2}")
    a(f"s_lshl_b32 s{s_wn}, s{s_w}, 10")
    a(f"s_add_u32 s{s_wn}, s{s_wn}, {RING + APART}")
    a(f"s_mov_b32 s{s_lb}, 0")
    a(f"s_mov_b32 s{s_bi}, 0")
    a("s_waitcnt lgkmcnt(0)")
    srd(a, sSA, 4, a_src[1] + a_bytes, 0)
    srd(a, sSW, 6, w_bytes, 0)

    def issue():
        a(f"s_add_u32 m0, s{s_wm}, s{s_lb}")
        a(f"s_add_u32 s{s_t0}, s{s_wn}, s{s_lb}")
        for i in range(nAi):
            if "noA" in dbg:
                a("s_nop 0")
                continue
            a(f"buffer_load_dwordx4 v{16 + i}, s[{sSA}:{sSA + 3}], s{s_a} offen offset:{1024 * i} lds")
        for P in range(NP):
            a(f"s_add_u32 m0, s{s_t0}, {P * PSTR}")
            if P == 0:
                a(f"s_add_u32 s{s_a}, s{s_a}, {KC * 2}")
            else:
                a("s_nop 0")
            if "noW" in dbg:
                continue
            a(f"buffer_load_dwordx4 v{20 + P}, s[{sSW}:{sSW + 3}], s{s_b} offen lds")
        a(f"s_add_u32 s{s_b}, s{s_b}, {KC * ldw}")
        a(f"s_add_u32 s{s_lb}, s{s_lb}, {BUFB}")
        a(f"s_add_u32 s{s_bi}, s{s_bi}, 1")
        a(f"s_cmp_eq_u32 s{s_bi}, {NB}")
        a(f"s_cselect_b32 s{s_lb}, 0, s{s_lb}")
        a(f"s_cselect_b32 s{s_bi}, 0, s{s_bi}")

    vml = VM(a)
    st = {"n": 0}

    def issue_upto(j):
        while st["n"] <= min(j, C - 1):
            issue()
            for _ in range(nld):
                vml.issue(st["n"])
            st["n"] += 1

    pfdone = {"d": pf is None}

    def prefetch():
        pfdone["d"] = True
        ka, nbytes = pf
        nsl = ntiles // 8
        per_wave = -(-nbytes // (nsl * 4 * 1024))
        a(f"s_load_dwordx2 s[36:37], s[0:1], {ka}")
        a(f"s_lshr_b32 s{s_t0}, s2, 3")
        a(f"s_lshl_b32 s{s_t0}, s{s_t0}, 2")
        a(f"s_add_u32 s{s_t0}, s{s_t0}, s{s_w}")
        a(f"s_mul_i32 s{s_t0}, s{s_t0}, {per_wave * 1024}")
        a("v_lshlrev_b32 v28, 4, v2")
        a("s_waitcnt lgkmcnt(0)")
        srd(a, sSO, 36, nbytes, 0)
        for i in range(per_wave):
            if i % 4 == 0 and i:
                a(f"s_add_u32 s{s_t0}, s{s_t0}, 4096")
            a(f"buffer_load_dwordx4 v[24:27], v28, s[{sSO}:{sSO + 3}], s{s_t0} offen offset:{(i % 4) * 1024}")
            vml.issue("pf")

    g0, g1 = (2, 3) if "deep3" in OPT else ((0, 2) if "deep1" in OPT else (1, 2))
    issue_upto(min(g0, NB - 2))
    for c in range(C):
        vml.wait([c])
        a("s_barrier")
        issue_upto(min(g1 * (c + 1) + g0, c + NB - 1))
        if st["n"] == C and not pfdone["d"]:
            prefetch()
    a("s_barrier")
    a.label(f"{name}_end")
    a("s_endpgm")
    return a.lines, descriptor(name, 256 if gen.STAMPS else max(nvgpr, 32), 56), lds_bytes
```

```python
import gen
from gen import (Asm, VM, srd, header, descriptor, vr, S, D, DFF, WS_QK, WS_VT, WS_O, WS_H, WS_H1,
                 KA_X, KA_WS, KA_OUT, stamp)


DFFP = 1408


def gemm5(name, *, a_src, lda, a_bytes, w_ka, ldw, w_bytes, N, nks, BM, BN, WGM, WGN, NB, ln, epi,
          tiles_n, ntiles, STG=1, pf=None, pf0=False, NL=4, dbg=()):
    a = Asm()
    KC, KS = 64, 2
    assert nks % KS == 0
    C = nks // KS
    assert NB <= C + 1
    RT = BM // WGM // 16
    CT = BN // WGN // 16
    NP = BN // 32
    RB = 128
    APART = BM * RB
    PSTR = KC * 64
    WPART = NP * PSTR
    BUFB = APART + WPART
    L_ST = 0
    L_CS = 1024
    RING = 2048
    lds_bytes = RING + NB * BUFB
    assert lds_bytes <= 160 * 1024, lds_bytes
    nAi = APART // 1024 // NL
    assert 1 <= nAi <= 4
    NPL = NP if NL == 4 else 1
    assert NL == 4 or NP * 4 == NL
    nld = nAi + NPL

    sSA, sSW, sSO, sSR = 8, 12, 16, 20
    s_w, s_m0, s_n0, s_t0, s_t1, s_t2, s_wm, s_wn, s_mw, s_nw = 24, 25, 26, 27, 28, 29, 30, 31, 32, 33
    s_a, s_b, s_lb, s_bi, s_cnt, s_rot = 42, 43, 44, 45, 46, 47

    header(a, name)
    a(f"s_cmp_ge_u32 s2, {ntiles}")
    a(f"s_cbranch_scc1 {name}_end")
    a(f"s_load_dwordx2 s[4:5], s[0:1], {a_src[0]}")
    a(f"s_load_dwordx2 s[6:7], s[0:1], {w_ka}")
    a(f"s_load_dwordx2 s[34:35], s[0:1], {KA_WS}")
    if epi[0] == "resid":
        a(f"s_load_dwordx2 s[36:37], s[0:1], {KA_OUT}")
        a(f"s_load_dwordx2 s[38:39], s[0:1], {KA_X}")
    a("v_lshrrev_b32 v1, 6, v0")
    a("v_and_b32 v2, 63, v0")
    per = (ntiles // tiles_n) // 8
    a(f"s_lshr_b32 s{s_t0}, s2, 3")
    if tiles_n & (tiles_n - 1) == 0:
        a(f"s_lshr_b32 s{s_t1}, s{s_t0}, {tiles_n.bit_length() - 1}")
        a(f"s_and_b32 s{s_t2}, s{s_t0}, {tiles_n - 1}")
    else:
        magic = (1 << 32) // tiles_n + 1
        a(f"s_mov_b32 s{s_t2}, {magic}")
        a(f"s_mul_hi_u32 s{s_t1}, s{s_t0}, s{s_t2}")
        a(f"s_mul_i32 s{s_t2}, s{s_t1}, {tiles_n}")
        a(f"s_sub_u32 s{s_t2}, s{s_t0}, s{s_t2}")
    a(f"s_and_b32 s{s_t0}, s2, 7")
    a(f"s_mul_i32 s{s_t0}, s{s_t0}, {per}")
    a(f"s_add_u32 s{s_t1}, s{s_t1}, s{s_t0}")
    a(f"v_readfirstlane_b32 s{s_w}, v1")
    a(f"s_mul_i32 s{s_m0}, s{s_t1}, {BM}")
    a(f"s_mul_i32 s{s_n0}, s{s_t2}, {BN}")
    a("v_and_b32 v3, 15, v2")
    a("v_lshrrev_b32 v4, 4, v2")
    a(f"s_cmp_ge_u32 s{s_w}, 4")
    a(f"s_cbranch_scc1 {name}_loader")

    import os
    OPT = os.environ.get("OPT", "")
    vm = VM(a)
    if "prioC" in OPT:
        a("s_setprio 2")
    if WGN == 1:
        a(f"s_mul_i32 s{s_mw}, s{s_w}, {16 * RT}")
        a(f"s_mul_i32 s{s_t0}, s{s_w}, {16 * RT * RB}")
        a(f"s_mov_b32 s{s_nw}, s{s_n0}")
        a(f"s_mov_b32 s{s_t1}, {RING}")
    else:
        a(f"s_lshr_b32 s{s_wm}, s{s_w}, 1")
        a(f"s_and_b32 s{s_wn}, s{s_w}, 1")
        a(f"s_mul_i32 s{s_mw}, s{s_wm}, {16 * RT}")
        a(f"s_mul_i32 s{s_t0}, s{s_wm}, {16 * RT * RB}")
        a(f"s_mul_i32 s{s_nw}, s{s_wn}, {16 * CT}")
        a(f"s_add_u32 s{s_nw}, s{s_nw}, s{s_n0}")
        a(f"s_mul_i32 s{s_t1}, s{s_wn}, {PSTR * (CT // 2)}")
        a(f"s_add_u32 s{s_t1}, s{s_t1}, {RING}")
    a(f"s_add_u32 s{s_mw}, s{s_mw}, s{s_m0}")
    a(f"s_add_u32 s{s_t0}, s{s_t0}, {RING}")
    a("v_and_b32 v8, 3, v2")
    a("v_bfe_u32 v9, v2, 2, 2")
    a("v_lshl_add_u32 v9, v4, 3, v9")
    a("v_lshlrev_b32 v9, 6, v9")
    a("v_lshl_add_u32 v9, v8, 3, v9")
    a(f"v_add_u32 v9, s{s_t1}, v9")
    a("v_and_b32 v10, 1, v4")
    a("v_lshlrev_b32 v10, 5, v10")
    a("v_xor_b32 v11, 32, v10")
    a("v_add_u32 v10, v9, v10")
    a("v_add_u32 v11, v9, v11")
    a("v_lshlrev_b32 v9, 7, v3")
    a(f"v_add_u32 v9, s{s_t0}, v9")
    a("v_lshrrev_b32 v8, 1, v3")
    a("v_xor_b32 v12, v4, v8")
    a("v_xor_b32 v13, 4, v12")
    a("v_lshl_add_u32 v12, v12, 4, v9")
    a("v_lshl_add_u32 v13, v13, 4, v9")
    if ln:
        a(f"s_add_u32 s{s_t0}, s{s_w}, 4")
        a(f"s_cmp_lt_u32 s{s_w}, {CT - 4}")
        a(f"s_cselect_b32 s{s_t1}, s{s_t0}, s{s_w}")
        for j, sc in enumerate((s_w, s_t1)):
            a(f"s_lshr_b32 s{s_t0}, s{sc}, 1")
            a(f"s_mul_i32 s{s_t0}, s{s_t0}, {PSTR}")
            a(f"s_and_b32 s{s_t2}, s{sc}, 1")
            a(f"s_cmp_eq_u32 s{s_t2}, 0")
            a("s_cselect_b64 vcc, -1, 0")
            a(f"v_cndmask_b32 v{14 + j}, v11, v10, vcc")
            a(f"v_add_u32 v{14 + j}, s{s_t0}, v{14 + j}")
            a(f"s_lshl_b32 s{48 + j}, s{sc}, 6")

    vA = 16
    vB = vA + 2 * STG * RT * 4
    vC = vB + 2 * STG * CT * 4
    vCS = vC + RT * CT * 4
    nCS = CT * 4 if ln else 0
    vST = vCS + nCS
    nST = 8 * RT if ln else 0
    vON = vST + nST
    vRS = vON + (4 if ln else 0)
    rows = 16 * RT
    nvgpr = vRS + (16 if epi[0] == "resid" or pf0 else 0)
    assert nvgpr <= 256

    def A_reg(s, rt, k=0):
        return vA + ((s * STG + k) * RT + rt) * 4

    def B_reg(s, ct, k=0):
        return vB + ((s * STG + k) * CT + ct) * 4

    def C_reg(rt, ct):
        return vC + (rt * CT + ct) * 4

    for i in range(RT * CT * 4 + nCS + nST):
        a(f"v_mov_b32 v{vC + i}, 0")
    if ln:
        a("s_mov_b32 s41, 0x3f803f80")
        for i in range(4):
            a(f"v_mov_b32 v{vON + i}, s41")
    a(f"s_mov_b32 s{s_bi}, 0")
    a(f"s_mov_b32 s{s_cnt}, {C // STG}")
    a(f"s_mov_b32 s40, {-(NB - 1) * BUFB}")
    a("s_waitcnt lgkmcnt(0)")
    stamp(a, vm, 0)
    if epi[0] == "qkv":
        srd(a, sSO, 34, WS_QK + S * 1024 * 2, 0)
        srd(a, sSR, 34, WS_VT + 512 * S * 2, 0)
    elif epi[0] == "resid":
        rs_pair = {KA_X: 38, KA_WS: 34, KA_OUT: 36}
        srd(a, sSR, rs_pair[epi[1][0]], epi[1][1] + S * D * 2, 0)
        srd(a, sSO, rs_pair[epi[2][0]], epi[2][1] + S * D * 2, 0)
        a("v_and_b32 v8, 1, v4")
        a("v_lshrrev_b32 v9, 1, v4")
        a("v_lshlrev_b32 v8, 5, v8")
        a("v_lshl_add_u32 v8, v9, 4, v8")
        a("v_lshl_add_u32 v14, v3, 10, v8")
        a(f"s_lshl_b32 s{s_t0}, s{s_mw}, 10")
        a(f"s_lshl_b32 s{s_t1}, s{s_nw}, 1")
        a(f"s_add_u32 s{s_a}, s{s_t0}, s{s_t1}")
        a(f"s_add_u32 s{s_t0}, s{s_a}, {epi[1][1]}")
        a(f"s_add_u32 s{s_t1}, s{s_t0}, {16 * 1024}")
        a(f"buffer_load_dwordx4 {vr(vRS, 4)}, v14, s[{sSR}:{sSR + 3}], s{s_t0} offen")
        a(f"buffer_load_dwordx4 {vr(vRS + 4, 4)}, v14, s[{sSR}:{sSR + 3}], s{s_t1} offen")
    elif epi[0] == "relu":
        srd(a, sSO, 34, WS_H1 + S * DFFP * 2, 0)

    if pf0:
        nsl = ntiles // 8
        per_wave = -(-w_bytes // (nsl * 4 * 1024))
        srd(a, sSW, 6, w_bytes, 0)
        a(f"s_lshr_b32 s{s_t0}, s2, 3")
        a(f"s_lshl_b32 s{s_t0}, s{s_t0}, 2")
        a(f"s_add_u32 s{s_t0}, s{s_t0}, s{s_w}")
        a(f"s_mul_i32 s{s_t0}, s{s_t0}, {per_wave * 1024}")
        a("v_lshlrev_b32 v8, 4, v2")
        for i in range(per_wave):
            if i % 4 == 0 and i:
                a(f"s_add_u32 s{s_t0}, s{s_t0}, 4096")
            a(f"buffer_load_dwordx4 {vr(vRS, 4)}, v8, s[{sSW}:{sSW + 3}], s{s_t0} offen offset:{(i % 4) * 1024}")

    def rd(ks0, s):
        ops = []
        for k in range(STG):
            ks = ks0 + k
            for rt in range(RT):
                ops.append(f"ds_read_b128 {vr(A_reg(s, rt, k), 4)}, v{12 + ks} offset:{16 * rt * RB}")
            for ct in range(CT):
                o = APART + (ct // 2) * PSTR + ks * 2048
                r = B_reg(s, ct, k)
                ops.append(f"ds_read_b64_tr_b16 {vr(r, 2)}, v{10 + (ct & 1)} offset:{o}")
                ops.append(f"ds_read_b64_tr_b16 {vr(r + 2, 2)}, v{10 + (ct & 1)} offset:{o + 256}")
            if ln:
                ops.insert(8, "s_waitcnt lgkmcnt(6)")
                for j in range(2):
                    r = vCS + 8 + (s * 2 + j) * 4
                    ops.append(f"ds_read_b64_tr_b16 {vr(r, 2)}, v{14 + j} offset:{APART + ks * 2048}")
                    ops.append(f"ds_read_b64_tr_b16 {vr(r + 2, 2)}, v{14 + j} offset:{APART + ks * 2048 + 256}")
        return ops

    def mm(d, x, y):
        return f"v_mfma_f32_16x16x32_bf16 {vr(d, 4)}, {vr(x, 4)}, {vr(y, 4)}, {vr(d, 4)}"

    def stage(orient, s, nxt):
        mf = []
        for k in range(STG):
            for ct in range(CT):
                br = B_reg(s, ct, k)
                for rt in range(RT):
                    cr, ar = C_reg(rt, ct), A_reg(s, rt, k)
                    mf.append(mm(cr, br, ar) if orient[ct] == "W" else mm(cr, ar, br))
                if ln and 2 <= ct < 4:
                    j = ct - 2
                    mf.append(mm(vCS + 4 * j, vON, vCS + 8 + (s * 2 + j) * 4))
                if ln and ct < RT:
                    ar = A_reg(s, ct, k)
                    mf.append(mm(vST + 8 * ct, vON, ar))
                    mf.append(mm(vST + 8 * ct + 4, ar, ar))
        nm = len(mf)
        for i, m in enumerate(mf):
            for op in nxt[i * len(nxt) // nm:(i + 1) * len(nxt) // nm]:
                a(op)
            a(m)

    def rotate():
        a(f"s_add_u32 s{s_bi}, s{s_bi}, 1")
        a(f"s_cmp_eq_u32 s{s_bi}, {NB}")
        a(f"s_cselect_b32 s{s_rot}, s40, {BUFB}")
        a(f"s_cselect_b32 s{s_bi}, 0, s{s_bi}")

    def compute(orient, tag):
        nW = sum(1 for o in orient if o == "W")
        nX = CT - nW
        if "cut0" in dbg:
            a("s_endpgm")
            return
        a("s_barrier")
        stamp(a, vm, 1)
        for op in rd(0, 0):
            a(op)
        bi = 0
        roll = "roll" in OPT
        if roll:
            a.label(f"{name}_loop{tag}")
        for it in range(1 if roll else C // STG):
            for half in (0, 1):
                newchunk = STG == 2 or half == 1
                if roll and newchunk:
                    rotate()
                if roll and half == 1:
                    a(f"s_sub_u32 s{s_cnt}, s{s_cnt}, 1")
                a("s_waitcnt lgkmcnt(0)")
                if newchunk:
                    a("s_barrier")
                    bi += 1
                    rot = BUFB
                    if bi == NB:
                        bi = 0
                        rot = -(NB - 1) * BUFB
                    for r in (10, 11, 12, 13) + ((14, 15) if ln else ()):
                        if roll:
                            a(f"v_add_u32 v{r}, s{s_rot}, v{r}")
                        else:
                            a(f"v_add_u32 v{r}, {rot & 0xffffffff}, v{r}")
                if "nocomp" not in dbg:
                    stage(orient, half, rd(0 if newchunk else 1, 1 - half))
        if roll:
            a(f"s_cmp_lg_u32 s{s_cnt}, 0")
            a(f"s_cbranch_scc1 {name}_loop{tag}")
        a("s_waitcnt lgkmcnt(0)")
        a.nop(8)
        stamp(a, vm, 2)
        if "cut1" in dbg:
            a("s_endpgm")
            return
        tS = vB
        ldo_ = {"qkv": 2048, "resid": 1024, "relu": DFFP * 2}[epi[0]]
        if epi[0] != "resid":
            a("v_and_b32 v8, 1, v4")
            a("v_lshrrev_b32 v9, 1, v4")
            a("v_lshlrev_b32 v8, 5, v8")
            a("v_lshl_add_u32 v8, v9, 4, v8")
            a(f"s_mov_b32 s{s_t0}, {ldo_}")
            a(f"v_mul_lo_u32 v14, v3, s{s_t0}")
            a("v_add_u32 v14, v14, v8")
            a("v_lshl_add_u32 v15, v3, 12, v8")
            a(f"s_mul_i32 s{s_a}, s{s_mw}, {ldo_}")
            a(f"s_lshl_b32 s{s_t1}, s{s_nw}, 1")
            a(f"s_add_u32 s{s_a}, s{s_a}, s{s_t1}")
            if epi[0] == "relu":
                a(f"s_add_u32 s{s_a}, s{s_a}, {WS_H1}")
            a(f"s_add_u32 s{s_b}, s{s_nw}, {16 * nW - 1024}")
            a(f"s_lshl_b32 s{s_b}, s{s_b}, 12")
            a(f"s_lshl_b32 s{s_t1}, s{s_mw}, 1")
            a(f"s_add_u32 s{s_b}, s{s_b}, s{s_t1}")
            a(f"s_add_u32 s{s_b}, s{s_b}, {WS_VT}")
        if ln:
            a("v_lshlrev_b32 v8, 2, v3")
            for j in range(2):
                a(f"v_add_u32 v9, s{48 + j}, v8")
                a(f"ds_write_b32 v9, v{vCS + 4 * j} offset:{L_CS}")
            a("s_waitcnt lgkmcnt(0)")
            a("s_barrier")
            a("v_lshlrev_b32 v8, 4, v4")
            a("v_lshlrev_b32 v9, 2, v3")
            for ct in range(CT):
                if orient[ct] == "W":
                    a(f"ds_read_b128 {vr(vCS + 4 * ct, 4)}, v8 offset:{L_CS + 64 * ct}")
                else:
                    a(f"ds_read_b32 v{vCS + 4 * ct}, v9 offset:{L_CS + 64 * ct}")
            a("v_lshlrev_b32 v8, 2, v4")
            a("v_sub_u32 v8, v3, v8")
            for rt in range(RT):
                q = vST + 8 * rt
                a(f"v_mov_b32 v{tS + 1}, 0")
                for r in range(4):
                    a(f"v_cmp_eq_u32 vcc, {r}, v8")
                    a.nop(2)
                    a(f"v_cndmask_b32 v{tS + 1}, v{tS + 1}, v{q + 4 + r}, vcc")
                for sw in ("v_permlane16_swap_b32", "v_permlane32_swap_b32"):
                    a(f"v_mov_b32 v{tS + 3}, v{tS + 1}")
                    a.nop(2)
                    a(f"{sw} v{tS + 1}, v{tS + 3}")
                    a.nop(2)
                    a(f"v_add_f32 v{tS + 1}, v{tS + 1}, v{tS + 3}")
                a(f"v_mov_b32 v{tS}, v{q}")
                a(f"v_mul_f32 v{tS}, 0x3b000000, v{tS}")
                a(f"v_mul_f32 v{tS + 1}, 0x3b000000, v{tS + 1}")
                a(f"v_fma_f32 v{tS + 2}, -v{tS}, v{tS}, v{tS + 1}")
                a(f"v_max_f32 v{tS + 2}, 0, v{tS + 2}")
                a(f"v_cvt_pk_bf16_f32 v{tS + 3}, v{tS}, v{tS + 2}")
                a.nop(1)
                a(f"v_lshlrev_b32 v{tS}, 16, v{tS + 3}")
                a(f"v_and_b32 v{tS + 2}, 0xffff0000, v{tS + 3}")
                a(f"v_add_f32 v{tS + 2}, 0x3727c5ac, v{tS + 2}")
                a(f"v_cvt_pk_bf16_f32 v{tS + 3}, v{tS + 2}, v{tS + 2}")
                a.nop(1)
                a(f"v_lshlrev_b32 v{tS + 2}, 16, v{tS + 3}")
                a(f"v_sqrt_f32 v{tS + 2}, v{tS + 2}")
                a.nop(1)
                a(f"v_cvt_pk_bf16_f32 v{tS + 3}, v{tS + 2}, v{tS + 2}")
                a.nop(1)
                a(f"v_lshlrev_b32 v{tS + 2}, 16, v{tS + 3}")
                a(f"v_rcp_f32 v{q}, v{tS + 2}")
                a.nop(1)
                a(f"v_mul_f32 v{q + 2}, -v{tS}, v{q}")
            if nX:
                a(f"s_lshl_b32 s{s_t0}, s{s_w}, 8")
                a("v_lshlrev_b32 v8, 2, v3")
                a(f"v_add_u32 v8, s{s_t0}, v8")
                for rt in range(RT):
                    q = vST + 8 * rt
                    a(f"ds_write_b32 v8, v{q} offset:{L_ST + 64 * rt}")
                    a(f"ds_write_b32 v8, v{q + 2} offset:{L_ST + 128 + 64 * rt}")
                a("v_lshlrev_b32 v8, 4, v4")
                a(f"v_add_u32 v8, s{s_t0}, v8")
                a("s_waitcnt lgkmcnt(0)")
                for rt in range(RT):
                    a(f"ds_read_b128 {vr(B_reg(1, 2 * rt), 4)}, v8 offset:{L_ST + 64 * rt}")
                    a(f"ds_read_b128 {vr(B_reg(1, 2 * rt + 1), 4)}, v8 offset:{L_ST + 128 + 64 * rt}")
                a("s_waitcnt lgkmcnt(0)")
            a("s_waitcnt lgkmcnt(0)")
            for rt in range(RT):
                q = vST + 8 * rt
                for ct in range(CT):
                    cr = C_reg(rt, ct)
                    cs = vCS + 4 * ct
                    for i in (0, 2):
                        if orient[ct] == "W":
                            a(f"v_pk_mul_f32 v[8:9], {vr(cs + i, 2)}, {vr(q + 2, 2)} op_sel_hi:[1,0]")
                            a(f"v_pk_fma_f32 {vr(cr + i, 2)}, {vr(cr + i, 2)}, {vr(q, 2)}, v[8:9] op_sel_hi:[1,0,1]")
                        else:
                            a(f"v_pk_mul_f32 v[8:9], {vr(B_reg(1, 2 * rt + 1) + i, 2)}, {vr(cs, 2)} op_sel_hi:[1,0]")
                            a(f"v_pk_fma_f32 {vr(cr + i, 2)}, {vr(cr + i, 2)}, {vr(B_reg(1, 2 * rt) + i, 2)}, v[8:9]")
        if "cut2" in dbg:
            a("s_endpgm")
            return
        ldo = {"qkv": 2048, "resid": 1024, "relu": DFFP * 2}[epi[0]]
        for rt in range(RT):
            for ct in range(CT):
                cr = C_reg(rt, ct)
                if epi[0] == "relu":
                    for i in range(4):
                        a(f"v_max_f32 v{cr + i}, 0, v{cr + i}")
        pairs = []
        for rt in range(RT):
            for ct in range(0, nW, 2):
                pairs.append((C_reg(rt, ct), C_reg(rt, ct + 1), "W", rt, ct))
        for ct in range(nW, CT):
            pairs.append((C_reg(0, ct), C_reg(1, ct), "X", 0, ct))
        if epi[0] == "resid":
            a("s_waitcnt vmcnt(0)")
        for k, (r0, r1, kind, rt, ct) in enumerate(pairs):
            d = vB + 4 * (k % 6)
            a(f"v_cvt_pk_bf16_f32 v{d}, v{r0}, v{r0 + 1}")
            a(f"v_cvt_pk_bf16_f32 v{d + 1}, v{r0 + 2}, v{r0 + 3}")
            a(f"v_cvt_pk_bf16_f32 v{d + 2}, v{r1}, v{r1 + 1}")
            a(f"v_cvt_pk_bf16_f32 v{d + 3}, v{r1 + 2}, v{r1 + 3}")
            if kind == "W":
                a(f"s_add_u32 s{s_t0}, s{s_a}, {16 * rt * ldo + 32 * ct}")
            else:
                a(f"s_add_u32 s{s_t0}, s{s_b}, {16 * (ct - nW) * 4096}")
            a.nop(1)
            a(f"v_permlane16_swap_b32 v{d}, v{d + 2}")
            a(f"v_permlane16_swap_b32 v{d + 1}, v{d + 3}")
            if epi[0] == "resid":
                a.nop(1)
                for i in range(4):
                    a(f"v_lshlrev_b32 v8, 16, v{d + i}")
                    a(f"v_and_b32 v9, 0xffff0000, v{d + i}")
                    a(f"v_lshlrev_b32 v10, 16, v{vRS + 4 * k + i}")
                    a(f"v_and_b32 v11, 0xffff0000, v{vRS + 4 * k + i}")
                    a("v_pk_add_f32 v[8:9], v[8:9], v[10:11]")
                    a(f"v_cvt_pk_bf16_f32 v{d + i}, v8, v9")
                a(f"s_add_u32 s{s_t0}, s{s_t0}, {epi[2][1]}")
            if epi[0] == "relu":
                a(f"s_add_u32 s{s_t1}, s{s_nw}, {16 * ct}")
                a(f"s_cmp_ge_u32 s{s_t1}, {DFFP}")
                a(f"s_cbranch_scc1 {name}_skip{tag}_{k}")
                a(f"s_cmp_lt_u32 s{s_t1}, {N}")
                a(f"s_cbranch_scc1 {name}_nz{tag}_{k}")
                for i in range(4):
                    a(f"v_mov_b32 v{d + i}, 0")
                a.label(f"{name}_nz{tag}_{k}")
            if kind == "W":
                a(f"buffer_store_dwordx4 {vr(d, 4)}, v14, s[{sSO}:{sSO + 3}], s{s_t0} offen")
            else:
                a(f"buffer_store_dwordx4 {vr(d, 4)}, v15, s[{sSR}:{sSR + 3}], s{s_t0} offen")
            if epi[0] == "relu":
                a.label(f"{name}_skip{tag}_{k}")
        stamp(a, vm, 4)
        a("s_endpgm")

    if epi[0] == "qkv":
        variants = {}
        for tn in range(tiles_n):
            o = tuple("W" if (tn * BN + 16 * ct) < 1024 else "X" for ct in range(CT))
            variants.setdefault(o, []).append(tn)
    else:
        variants = {tuple("W" for _ in range(CT)): list(range(tiles_n))}
    keys = list(variants.keys())
    for vi, o in enumerate(keys):
        if vi < len(keys) - 1:
            a(f"s_cmp_gt_u32 s{s_n0}, {max(variants[o]) * BN}")
            a(f"s_cbranch_scc1 {name}_var{vi + 1}")
        compute(o, vi)
        if vi < len(keys) - 1:
            a.label(f"{name}_var{vi + 1}")

    a.label(f"{name}_loader")
    if "cut0" in dbg:
        a("s_endpgm")
    a(f"s_sub_u32 s{s_w}, s{s_w}, 4")
    if "prioL" in OPT:
        a("s_setprio 3")
    a("v_lshrrev_b32 v5, 3, v2")
    a("v_and_b32 v6, 7, v2")
    a(f"s_mov_b32 s{s_t0}, {lda}")
    a("v_lshrrev_b32 v8, 1, v5")
    a("v_xor_b32 v8, v8, v6")
    if nAi == 1:
        a(f"s_and_b32 s{s_t1}, s{s_w}, 1")
        a(f"s_lshl_b32 s{s_t1}, s{s_t1}, 2")
        a(f"v_xor_b32 v8, s{s_t1}, v8")
    a(f"v_mul_lo_u32 v7, v5, s{s_t0}")
    for i in range(nAi):
        if i & 1:
            a("v_xor_b32 v9, 4, v8")
            a(f"v_lshl_add_u32 v{16 + i}, v9, 4, v7")
        else:
            a(f"v_lshl_add_u32 v{16 + i}, v8, 4, v7")
        if i:
            a(f"v_add_u32 v{16 + i}, {8 * i * lda - 1024 * i}, v{16 + i}")
    a("v_lshrrev_b32 v6, 2, v2")
    a(f"s_mov_b32 s{s_t0}, {ldw}")
    a(f"v_mul_lo_u32 v6, v6, s{s_t0}")
    a("v_lshrrev_b32 v9, 5, v2")
    a("v_lshlrev_b32 v9, 1, v9")
    a("v_and_b32 v8, 3, v2")
    a("v_xor_b32 v9, v9, v8")
    a("v_lshl_add_u32 v20, v9, 4, v6")
    if NL == 4:
        for P in range(1, NP):
            a(f"v_add_u32 v{20 + P}, {64 * P}, v20")
    else:
        a(f"s_lshr_b32 s{s_t1}, s{s_w}, 2")
        a(f"s_lshl_b32 s{s_t1}, s{s_t1}, 6")
        a(f"v_add_u32 v20, s{s_t1}, v20")
    a(f"s_mul_i32 s{s_t1}, s{s_w}, {BM // NL}")
    a(f"s_add_u32 s{s_a}, s{s_t1}, s{s_m0}")
    a(f"s_mul_i32 s{s_a}, s{s_a}, {lda}")
    a(f"s_add_u32 s{s_a}, s{s_a}, {a_src[1]}")
    a(f"s_mul_i32 s{s_wm}, s{s_w}, {APART // NL}")
    a(f"s_add_u32 s{s_wm}, s{s_wm}, {RING}")
    a(f"s_and_b32 s{s_t1}, s{s_w}, 3")
    a(f"s_mul_i32 s{s_b}, s{s_t1}, {16 * ldw}")
    a(f"s_lshl_b32 s{s_t2}, s{s_n0}, 1")
    a(f"s_add_u32 s{s_b}, s{s_b}, s{s_t2}")
    a(f"s_lshl_b32 s{s_wn}, s{s_t1}, 10")
    a(f"s_add_u32 s{s_wn}, s{s_wn}, {RING + APART}")
    if NL == 8:
        a(f"s_lshr_b32 s{s_t1}, s{s_w}, 2")
        a(f"s_mul_i32 s{s_t1}, s{s_t1}, {PSTR}")
        a(f"s_add_u32 s{s_wn}, s{s_wn}, s{s_t1}")
    a(f"s_mov_b32 s{s_lb}, 0")
    a(f"s_mov_b32 s{s_bi}, 0")
    a("s_waitcnt lgkmcnt(0)")
    srd(a, sSA, 4, a_src[1] + a_bytes, 0)
    srd(a, sSW, 6, w_bytes, 0)

    def issue():
        a(f"s_add_u32 m0, s{s_wm}, s{s_lb}")
        a(f"s_add_u32 s{s_t0}, s{s_wn}, s{s_lb}")
        for i in range(nAi):
            if "noA" in dbg:
                a("s_nop 0")
                continue
            a(f"buffer_load_dwordx4 v{16 + i}, s[{sSA}:{sSA + 3}], s{s_a} offen offset:{1024 * i} lds")
        for P in range(NPL):
            a(f"s_add_u32 m0, s{s_t0}, {P * PSTR}")
            if P == 0:
                a(f"s_add_u32 s{s_a}, s{s_a}, {KC * 2}")
            else:
                a("s_nop 0")
            if "noW" in dbg:
                continue
            a(f"buffer_load_dwordx4 v{20 + P}, s[{sSW}:{sSW + 3}], s{s_b} offen lds")
        a(f"s_add_u32 s{s_b}, s{s_b}, {KC * ldw}")
        a(f"s_add_u32 s{s_lb}, s{s_lb}, {BUFB}")
        a(f"s_add_u32 s{s_bi}, s{s_bi}, 1")
        a(f"s_cmp_eq_u32 s{s_bi}, {NB}")
        a(f"s_cselect_b32 s{s_lb}, 0, s{s_lb}")
        a(f"s_cselect_b32 s{s_bi}, 0, s{s_bi}")

    vml = VM(a)
    st = {"n": 0}

    def issue_upto(j):
        while st["n"] <= min(j, C - 1):
            issue()
            for _ in range(nld):
                vml.issue(st["n"])
            st["n"] += 1

    pfdone = {"d": pf is None}

    def prefetch():
        pfdone["d"] = True
        ka, nbytes = pf
        nsl = ntiles // 8
        per_wave = -(-nbytes // (nsl * NL * 1024))
        a(f"s_load_dwordx2 s[36:37], s[0:1], {ka}")
        a(f"s_lshr_b32 s{s_t0}, s2, 3")
        a(f"s_mul_i32 s{s_t0}, s{s_t0}, {NL}")
        a(f"s_add_u32 s{s_t0}, s{s_t0}, s{s_w}")
        a(f"s_mul_i32 s{s_t0}, s{s_t0}, {per_wave * 1024}")
        a("v_lshlrev_b32 v28, 4, v2")
        a("s_waitcnt lgkmcnt(0)")
        srd(a, sSO, 36, nbytes, 0)
        for i in range(per_wave):
            if i % 4 == 0 and i:
                a(f"s_add_u32 s{s_t0}, s{s_t0}, 4096")
            a(f"buffer_load_dwordx4 v[24:27], v28, s[{sSO}:{sSO + 3}], s{s_t0} offen offset:{(i % 4) * 1024}")
            vml.issue("pf")

    g0, g1 = (2, 3) if "deep3" in OPT else ((0, 2) if "deep1" in OPT else (1, 2))
    issue_upto(min(g0, NB - 2))
    for c in range(C):
        vml.wait([c])
        a("s_barrier")
        issue_upto(min(g1 * (c + 1) + g0, c + NB - 1))
        if st["n"] == C and not pfdone["d"]:
            prefetch()
    a("s_barrier")
    a.label(f"{name}_end")
    a("s_endpgm")
    return a.lines, descriptor(name, 256 if gen.STAMPS else max(nvgpr, 32), 56), lds_bytes
```

```python
import sys

S, D, DFF = 2048, 512, 1376
WS_QK = 0
WS_VT = 4 << 20
WS_O = 6 << 20
WS_H = 8 << 20
WS_H1 = 10 << 20
KA_X, KA_WQKV, KA_WO, KA_BX, KA_W1, KA_W2, KA_OUT, KA_DBG, KA_WS = [8 * i for i in range(9)]


class Asm:
    def __init__(self):
        self.lines = []

    def __call__(self, s):
        self.lines.append("    " + s)

    def label(self, l):
        self.lines.append(l + ":")

    def c(self, s):
        self.lines.append("    ; " + s)

    def nop(self, n):
        while n > 0:
            k = min(n, 16)
            self(f"s_nop {k - 1}")
            n -= k


STAMPS = False


def stamp(a, vm, i, s_w=24, vb=252):
    if not STAMPS:
        return
    a("s_memtime s[50:51]")
    a("s_waitcnt lgkmcnt(0)")
    a("s_add_u32 s52, s34, 0x8000000")
    a("s_addc_u32 s53, s35, 0")
    a(f"s_lshl_b32 s54, s2, 4")
    a(f"s_add_u32 s54, s54, s{s_w}")
    a(f"s_lshl_b32 s54, s54, 7")
    a(f"s_add_u32 s54, s54, {8 * i}")
    a("s_add_u32 s52, s52, s54")
    a("s_addc_u32 s53, s53, 0")
    a(f"v_mov_b32 v{vb + 2}, s50")
    a(f"v_mov_b32 v{vb + 3}, s51")
    a(f"v_mov_b32 v{vb + 1}, 0")
    a(f"global_store_dwordx2 v{vb + 1}, v[{vb + 2}:{vb + 3}], s[52:53]")
    vm.issue("stamp")


class VM:
    def __init__(self, a):
        self.a = a
        self.q = []

    def issue(self, tag):
        self.q.append(tag)
        assert len(self.q) <= 63, "too many outstanding vmem ops"

    def wait(self, tags):
        idx = [i for i, t in enumerate(self.q) if t in tags]
        if not idx:
            return
        i = max(idx)
        n = len(self.q) - 1 - i
        self.a(f"s_waitcnt vmcnt({n})")
        self.q = self.q[i + 1:]

    def wait_all(self):
        if self.q:
            self.a("s_waitcnt vmcnt(0)")
            self.q = []


def srd(a, sd, sbase, nbytes, off=0):
    if off:
        a(f"s_add_u32 s{sd}, s{sbase}, {off}")
        a(f"s_addc_u32 s{sd + 1}, s{sbase + 1}, 0")
    else:
        a(f"s_mov_b32 s{sd}, s{sbase}")
        a(f"s_mov_b32 s{sd + 1}, s{sbase + 1}")
    a(f"s_mov_b32 s{sd + 2}, {nbytes}")
    a(f"s_mov_b32 s{sd + 3}, 0x00020000")


def header(a, name):
    a.lines.append(f".globl {name}")
    a.lines.append(".p2align 8")
    a.lines.append(f".type {name},@function")
    a.label(name)


def descriptor(name, nvgpr, nsgpr=100):
    acc = (nvgpr + 3) // 4 * 4
    return "\n".join([
        f".amdhsa_kernel {name}",
        f"  .amdhsa_next_free_vgpr {nvgpr}",
        f"  .amdhsa_next_free_sgpr {nsgpr}",
        f"  .amdhsa_accum_offset {acc}",
        "  .amdhsa_group_segment_fixed_size 0",
        "  .amdhsa_kernarg_size 72",
        "  .amdhsa_user_sgpr_count 2",
        "  .amdhsa_user_sgpr_kernarg_segment_ptr 1",
        "  .amdhsa_system_sgpr_workgroup_id_x 1",
        ".end_amdhsa_kernel",
    ])


def vr(b, n=1):
    return f"v{b}" if n == 1 else f"v[{b}:{b + n - 1}]"


class SegBases:
    def __init__(self, a, first_reg):
        self.a = a
        self.next = first_reg
        self.regs = {}

    def prepare(self, key, lane_reg, offsets):
        for seg in sorted(set(o >> 15 for o in offsets)):
            if (key, seg) in self.regs:
                continue
            r = self.next
            self.next += 1
            self.regs[(key, seg)] = r
            if seg == 0:
                self.a(f"v_mov_b32 v{r}, v{lane_reg}")
            else:
                self.a(f"v_add_u32 v{r}, {seg << 15}, v{lane_reg}")

    def ref(self, key, off):
        return self.regs[(key, off >> 15)], off & 32767


def gemm_kernel(name, *, a_src, lda, a_bytes, w_ka, ldw, w_bytes, N, chunks, BM, BN, WGM, WGN,
                NB, a_mode, ln, epi, tiles_n, ntiles, dbg=()):
    a = Asm()
    vm = VM(a)
    RT = BM // WGM // 16
    CT = BN // WGN // 16
    NP = BN // 32
    KSM = max(chunks)
    PSTR = KSM * 2048
    RB = KSM * 64
    APART = BM * RB
    WPART = NP * PSTR
    C = len(chunks)
    kstart = [32 * sum(chunks[:i]) for i in range(C)]
    if a_mode == "regs":
        assert C == 1 and NB == 1
        BUFB = 0
        lds_bytes = max(APART, WPART)
        woff0 = 0
    else:
        BUFB = APART + WPART
        lds_bytes = NB * BUFB
        woff0 = APART
    assert lds_bytes <= 160 * 1024

    vA = 20
    nA = KSM * RT * 4 if a_mode == "regs" else 2 * RT * 4
    vB = vA + nA
    nB = max(2 * CT * 4, 24)
    vC = vB + nB
    nC = RT * CT * 4
    vR = vC + nC
    nR = RT * CT * 2 if epi[0] == "resid" else 0
    sb = SegBases(a, vR + nR)

    def A_reg(s, ks, rt):
        if a_mode == "regs":
            return vA + (ks * RT + rt) * 4
        return vA + (s * RT + rt) * 4

    def B_reg(s, ct):
        return vB + (s * CT + ct) * 4

    def C_reg(rt, ct):
        return vC + (rt * CT + ct) * 4

    sSA, sSW, sSO, sSR = 8, 12, 16, 20
    s_w, s_m0, s_n0, s_t0, s_t1, s_t2, s_wm, s_wn, s_mw, s_nw = 24, 25, 26, 27, 28, 29, 30, 31, 32, 33

    header(a, name)
    a(f"s_cmp_ge_u32 s2, {ntiles}")
    a(f"s_cbranch_scc1 {name}_end")
    a(f"s_load_dwordx2 s[4:5], s[0:1], {a_src[0]}")
    a(f"s_load_dwordx2 s[6:7], s[0:1], {w_ka}")
    a(f"s_load_dwordx2 s[34:35], s[0:1], {KA_WS}")
    a(f"s_load_dwordx2 s[36:37], s[0:1], {KA_OUT}")
    a(f"s_load_dwordx2 s[38:39], s[0:1], {KA_X}")
    magic = (1 << 32) // tiles_n + 1
    a(f"s_mov_b32 s{s_t0}, {magic}")
    a(f"s_mul_hi_u32 s{s_t1}, s2, s{s_t0}")
    a(f"s_mul_i32 s{s_t2}, s{s_t1}, {tiles_n}")
    a(f"s_sub_u32 s{s_t2}, s2, s{s_t2}")
    a(f"s_mul_i32 s{s_m0}, s{s_t1}, {BM}")
    a(f"s_mul_i32 s{s_n0}, s{s_t2}, {BN}")
    a("v_lshrrev_b32 v1, 6, v0")
    a("v_and_b32 v2, 63, v0")
    a.nop(1)
    a(f"v_readfirstlane_b32 s{s_w}, v1")
    a("v_and_b32 v3, 15, v2")
    a("v_lshrrev_b32 v4, 4, v2")
    a.nop(2)
    if WGN == 1:
        a(f"s_mov_b32 s{s_wm}, s{s_w}")
        a(f"s_mov_b32 s{s_wn}, 0")
    else:
        a(f"s_lshr_b32 s{s_wm}, s{s_w}, 1")
        a(f"s_and_b32 s{s_wn}, s{s_w}, 1")
    a(f"s_mul_i32 s{s_mw}, s{s_wm}, {16 * RT}")
    a(f"s_add_u32 s{s_mw}, s{s_mw}, s{s_m0}")
    a(f"s_mul_i32 s{s_nw}, s{s_wn}, {16 * CT}")
    a(f"s_add_u32 s{s_nw}, s{s_nw}, s{s_n0}")
    CPR = RB // 16
    RPI = 64 // CPR
    lg = CPR.bit_length() - 1
    a(f"v_lshrrev_b32 v5, {lg}, v2")
    a(f"v_and_b32 v7, {CPR - 1}, v2")
    a("v_xor_b32 v7, v7, v5")
    a(f"s_mov_b32 s{s_t0}, {lda}")
    a(f"v_mul_lo_u32 v5, v5, s{s_t0}")
    a("v_lshrrev_b32 v6, 2, v2")
    a(f"s_mov_b32 s{s_t0}, {ldw}")
    a(f"v_mul_lo_u32 v6, v6, s{s_t0}")
    a("v_lshrrev_b32 v9, 5, v2")
    a("v_lshlrev_b32 v9, 1, v9")
    a("v_and_b32 v8, 3, v2")
    a("v_xor_b32 v9, v9, v8")
    a("v_lshl_add_u32 v6, v9, 4, v6")
    a("v_bfe_u32 v9, v2, 2, 2")
    a("v_lshl_add_u32 v9, v4, 3, v9")
    a("v_lshlrev_b32 v9, 6, v9")
    a("v_lshl_add_u32 v9, v8, 3, v9")
    a("v_and_b32 v10, 1, v4")
    a("v_lshlrev_b32 v10, 5, v10")
    a("v_xor_b32 v11, 32, v10")
    a("v_add_u32 v10, v9, v10")
    a("v_add_u32 v11, v9, v11")
    if WGN > 1:
        a(f"s_mul_i32 s{s_t0}, s{s_wn}, {PSTR * (CT // 2)}")
        a(f"v_add_u32 v10, s{s_t0}, v10")
        a(f"v_add_u32 v11, s{s_t0}, v11")
    a(f"s_mul_i32 s{s_t0}, s{s_wm}, {16 * RT * RB}")
    a(f"v_lshlrev_b32 v9, {RB.bit_length() - 1}, v3")
    a(f"v_add_u32 v9, s{s_t0}, v9")
    for j in range(4):
        a(f"v_add_u32 v{16 + j}, {4 * j}, v4")
        a(f"v_xor_b32 v{16 + j}, v{16 + j}, v3")
        a(f"v_lshl_add_u32 v{16 + j}, v{16 + j}, 4, v9")
    a("s_waitcnt lgkmcnt(0)")
    srd(a, sSA, 4, a_src[1] + a_bytes, 0)
    srd(a, sSW, 6, w_bytes, 0)
    stamp(a, vm, 0)

    def w_off(c, pp, ks):
        return (c % NB) * BUFB + woff0 + pp * PSTR + ks * 2048

    def a_off(c, rt, ks):
        return (c % NB) * BUFB + 16 * rt * RB + (ks >> 2) * 256

    npw = CT // 2 if WGN > 1 else NP
    for hf in (0, 1):
        sb.prepare(("w", hf), 10 + hf, [w_off(c, pp, ks) + t for c in range(min(C, NB)) for pp in range(npw)
                                        for ks in range(KSM) for t in (0, 256)])
    for j in range(4):
        sb.prepare(("a", j), 16 + j, [a_off(c, rt, ks) for c in range(min(C, NB)) for rt in range(RT)
                                      for ks in range(KSM)])
    nvgpr = sb.next
    assert nvgpr <= 256, nvgpr

    def issue_A(c):
        rows_w = BM // 4
        a(f"s_mul_i32 s{s_t1}, s{s_w}, {rows_w}")
        a(f"s_add_u32 s{s_t0}, s{s_t1}, s{s_m0}")
        a(f"s_mul_i32 s{s_t0}, s{s_t0}, {lda}")
        a(f"s_add_u32 s{s_t0}, s{s_t0}, {a_src[1] + kstart[c] * 2}")
        a(f"s_mul_i32 s{s_t1}, s{s_t1}, {RB}")
        for i in range(rows_w // RPI):
            base_row = i * RPI
            a(f"v_xor_b32 v8, {base_row & 15}, v7")
            a("v_lshl_add_u32 v8, v8, 4, v5")
            a(f"s_add_u32 s{s_t2}, s{s_t1}, {(c % NB) * BUFB + i * 1024}")
            a(f"s_mov_b32 m0, s{s_t2}")
            a(f"s_add_u32 s40, s{s_t0}, {base_row * lda}")
            a(f"buffer_load_dwordx4 v8, s[{sSA}:{sSA + 3}], s40 offen lds")
            vm.issue(("A", c))

    def issue_B(c):
        ksc = chunks[c]
        nper = ksc // 2
        a(f"s_mul_i32 s{s_t1}, s{s_w}, {ksc * 8}")
        a(f"s_add_u32 s{s_t0}, s{s_t1}, {kstart[c]}")
        a(f"s_mul_i32 s{s_t0}, s{s_t0}, {ldw}")
        a(f"s_lshl_b32 s{s_t2}, s{s_n0}, 1")
        a(f"s_add_u32 s{s_t0}, s{s_t0}, s{s_t2}")
        a(f"s_lshl_b32 s{s_t1}, s{s_t1}, 6")
        for P in range(NP):
            for i in range(nper):
                a(f"s_add_u32 s{s_t2}, s{s_t1}, {(c % NB) * BUFB + woff0 + P * PSTR + i * 1024}")
                a(f"s_mov_b32 m0, s{s_t2}")
                a(f"s_add_u32 s40, s{s_t0}, {16 * i * ldw + 64 * P}")
                a(f"buffer_load_dwordx4 v6, s[{sSW}:{sSW + 3}], s40 offen lds")
                vm.issue(("B", c))

    def rd_B(c, ks, s, ct):
        off = w_off(c, ct // 2, ks)
        base, o = sb.ref(("w", ct & 1), off)
        base2, o2 = sb.ref(("w", ct & 1), off + 256)
        r = B_reg(s, ct)
        a(f"ds_read_b64_tr_b16 {vr(r, 2)}, v{base} offset:{o}")
        a(f"ds_read_b64_tr_b16 {vr(r + 2, 2)}, v{base2} offset:{o2}")

    def rd_A(c, ks, s, rt):
        base, o = sb.ref(("a", ks & 3), a_off(c, rt, ks))
        a(f"ds_read_b128 {vr(A_reg(s, ks, rt), 4)}, v{base} offset:{o}")

    if a_mode == "regs":
        issue_A(0)
    else:
        for c in range(min(C, NB)):
            issue_A(c)
            issue_B(c)

    if epi[0] == "qkv":
        srd(a, sSO, 34, WS_QK + S * 1024 * 2, 0)
        srd(a, sSR, 34, WS_VT + 512 * S * 2, 0)
        a("v_lshlrev_b32 v12, 11, v3")
        a("v_lshl_add_u32 v12, v4, 3, v12")
        a("v_lshlrev_b32 v13, 12, v3")
        a("v_lshl_add_u32 v13, v4, 3, v13")
    elif epi[0] == "resid":
        rs_pair = {KA_X: 38, KA_WS: 34, KA_OUT: 36}
        srd(a, sSR, rs_pair[epi[1][0]], epi[1][1] + S * D * 2, 0)
        srd(a, sSO, rs_pair[epi[2][0]], epi[2][1] + S * D * 2, 0)
        a("v_lshlrev_b32 v12, 10, v3")
        a("v_lshl_add_u32 v12, v4, 3, v12")
        for rt in range(RT):
            a(f"s_add_u32 s{s_t0}, s{s_mw}, {16 * rt}")
            a(f"s_lshl_b32 s{s_t0}, s{s_t0}, 10")
            a(f"s_lshl_b32 s{s_t1}, s{s_nw}, 1")
            a(f"s_add_u32 s{s_t0}, s{s_t0}, s{s_t1}")
            a(f"s_add_u32 s{s_t0}, s{s_t0}, {epi[1][1]}")
            for ct in range(CT):
                a(f"buffer_load_dwordx2 {vr(vR + (rt * CT + ct) * 2, 2)}, v12, s[{sSR}:{sSR + 3}], s{s_t0} offen offset:{32 * ct}")
                vm.issue("R")
    elif epi[0] == "relu":
        srd(a, sSO, 34, WS_H1 + S * DFF * 2, 0)
        a(f"s_mov_b32 s{s_t0}, {DFF * 2}")
        a(f"v_mul_lo_u32 v12, v3, s{s_t0}")
        a("v_lshl_add_u32 v12, v4, 3, v12")

    for i in range(nC):
        a(f"v_mov_b32 v{vC + i}, 0")

    if a_mode == "regs":
        stamp(a, vm, 1)
        vm.wait([("A", 0)])
        stamp(a, vm, 2)
        n = 0
        for rt in range(RT):
            for ks in range(chunks[0]):
                rd_A(0, ks, 0, rt)
                n += 1
                if n % 8 == 0:
                    a("s_waitcnt lgkmcnt(4)")
        a("s_waitcnt lgkmcnt(0)")
        a("s_barrier")
        stamp(a, vm, 3)
        issue_B(0)
        stamp(a, vm, 4)

    if ln:
        assert a_mode == "regs"
        a("s_mov_b32 s41, 0x3f803f80")
        a("v_mov_b32 v14, s41")
        tS = vB
        for rt in range(RT):
            for i in range(8):
                a(f"v_mov_b32 v{tS + i}, 0")
            for ks in range(chunks[0]):
                for j in range(4):
                    r = A_reg(0, ks, rt) + j
                    a(f"v_dot2_f32_bf16 v{tS + j}, v{r}, v14, v{tS + j}")
                    a(f"v_dot2_f32_bf16 v{tS + 4 + j}, v{r}, v{r}, v{tS + 4 + j}")
            a.nop(4)
            a(f"v_add_f32 v{tS}, v{tS}, v{tS + 1}")
            a(f"v_add_f32 v{tS + 2}, v{tS + 2}, v{tS + 3}")
            a(f"v_add_f32 v{tS + 4}, v{tS + 4}, v{tS + 5}")
            a(f"v_add_f32 v{tS + 6}, v{tS + 6}, v{tS + 7}")
            a(f"v_add_f32 v{tS}, v{tS}, v{tS + 2}")
            a(f"v_add_f32 v{tS + 1}, v{tS + 4}, v{tS + 6}")
            for sw in ("v_permlane16_swap_b32", "v_permlane32_swap_b32"):
                a(f"v_mov_b32 v{tS + 2}, v{tS}")
                a(f"v_mov_b32 v{tS + 3}, v{tS + 1}")
                a.nop(2)
                a(f"{sw} v{tS}, v{tS + 2}")
                a(f"{sw} v{tS + 1}, v{tS + 3}")
                a.nop(2)
                a(f"v_add_f32 v{tS}, v{tS}, v{tS + 2}")
                a(f"v_add_f32 v{tS + 1}, v{tS + 1}, v{tS + 3}")
            a(f"v_mul_f32 v{tS}, 0x3b000000, v{tS}")
            a(f"v_mul_f32 v{tS + 1}, 0x3b000000, v{tS + 1}")
            a(f"v_fma_f32 v{tS + 2}, -v{tS}, v{tS}, v{tS + 1}")
            a(f"v_max_f32 v{tS + 2}, 0, v{tS + 2}")
            a(f"v_cvt_pk_bf16_f32 v{tS + 3}, v{tS}, v{tS + 2}")
            a.nop(1)
            a(f"v_lshlrev_b32 v{tS}, 16, v{tS + 3}")
            a(f"v_and_b32 v{tS + 2}, 0xffff0000, v{tS + 3}")
            a(f"v_add_f32 v{tS + 2}, 0x3727c5ac, v{tS + 2}")
            a(f"v_cvt_pk_bf16_f32 v{tS + 3}, v{tS + 2}, v{tS + 2}")
            a.nop(1)
            a(f"v_lshlrev_b32 v{tS + 2}, 16, v{tS + 3}")
            a(f"v_sqrt_f32 v{tS + 2}, v{tS + 2}")
            a.nop(1)
            a(f"v_cvt_pk_bf16_f32 v{tS + 3}, v{tS + 2}, v{tS + 2}")
            a.nop(1)
            a(f"v_lshlrev_b32 v{tS + 2}, 16, v{tS + 3}")
            a(f"v_rcp_f32 v{tS + 4}, v{tS + 2}")
            a.nop(1)
            a(f"v_mul_f32 v{tS + 6}, v{tS}, v{tS + 4}")
            a(f"v_sub_f32 v{tS + 6}, 0, v{tS + 6}")
            i = 0
            for ks in range(chunks[0]):
                for j in range(4):
                    r = A_reg(0, ks, rt) + j
                    t = tS + 8 + 2 * (i % 8)
                    i += 1
                    a(f"v_lshlrev_b32 v{t}, 16, v{r}")
                    a(f"v_and_b32 v{t + 1}, 0xffff0000, v{r}")
                    a(f"v_pk_fma_f32 {vr(t, 2)}, {vr(t, 2)}, {vr(tS + 4, 2)}, {vr(tS + 6, 2)} op_sel_hi:[1,0,0]")
                    a(f"v_cvt_pk_bf16_f32 v{r}, v{t}, v{t + 1}")
        a.nop(2)

    def mainloop(orient):
        for c in range(C):
            if c == 0:
                stamp(a, vm, 5)
            vm.wait([("A", c), ("B", c)])
            a("s_barrier")
            if c == 0:
                stamp(a, vm, 6)
            if c >= 1 and c - 1 + NB < C:
                issue_A(c - 1 + NB)
                issue_B(c - 1 + NB)
            if a_mode == "lds":
                for rt in range(RT):
                    rd_A(c, 0, 0, rt)
            for ct in range(CT):
                rd_B(c, 0, 0, ct)
            for ks in range(chunks[c]):
                s = ks & 1
                a("s_waitcnt lgkmcnt(0)")
                nxt = ks + 1 < chunks[c]
                if nxt and a_mode == "lds":
                    for rt in range(RT):
                        rd_A(c, ks + 1, 1 - s, rt)
                for ct in range(CT):
                    if nxt:
                        rd_B(c, ks + 1, 1 - s, ct)
                    for rt in range(RT):
                        cr = C_reg(rt, ct)
                        ar = A_reg(s, ks, rt)
                        br = B_reg(s, ct)
                        if orient[ct] == "W":
                            a(f"v_mfma_f32_16x16x32_bf16 {vr(cr, 4)}, {vr(br, 4)}, {vr(ar, 4)}, {vr(cr, 4)}")
                        else:
                            a(f"v_mfma_f32_16x16x32_bf16 {vr(cr, 4)}, {vr(ar, 4)}, {vr(br, 4)}, {vr(cr, 4)}")
        a.nop(10)
        stamp(a, vm, 7)

    def epilogue(orient):
        t = vB
        if epi[0] == "qkv":
            for rt in range(RT):
                for ct in range(CT):
                    cr = C_reg(rt, ct)
                    tt = t + 2 * ((rt * CT + ct) % 8)
                    a(f"v_cvt_pk_bf16_f32 v{tt}, v{cr}, v{cr + 1}")
                    a(f"v_cvt_pk_bf16_f32 v{tt + 1}, v{cr + 2}, v{cr + 3}")
                    if orient[ct] == "W":
                        a(f"s_add_u32 s{s_t0}, s{s_mw}, {16 * rt}")
                        a(f"s_lshl_b32 s{s_t0}, s{s_t0}, 11")
                        a(f"s_lshl_b32 s{s_t1}, s{s_nw}, 1")
                        a(f"s_add_u32 s{s_t0}, s{s_t0}, s{s_t1}")
                        a(f"buffer_store_dwordx2 {vr(tt, 2)}, v12, s[{sSO}:{sSO + 3}], s{s_t0} offen offset:{32 * ct}")
                    else:
                        a(f"s_add_u32 s{s_t0}, s{s_nw}, {16 * ct - 1024}")
                        a(f"s_lshl_b32 s{s_t0}, s{s_t0}, 12")
                        a(f"s_add_u32 s{s_t1}, s{s_mw}, {16 * rt}")
                        a(f"s_lshl_b32 s{s_t1}, s{s_t1}, 1")
                        a(f"s_add_u32 s{s_t0}, s{s_t0}, s{s_t1}")
                        a(f"s_add_u32 s{s_t0}, s{s_t0}, {WS_VT}")
                        a(f"buffer_store_dwordx2 {vr(tt, 2)}, v13, s[{sSR}:{sSR + 3}], s{s_t0} offen")
        elif epi[0] == "resid":
            vm.wait(["R"])
            for rt in range(RT):
                a(f"s_add_u32 s{s_t0}, s{s_mw}, {16 * rt}")
                a(f"s_lshl_b32 s{s_t0}, s{s_t0}, 10")
                a(f"s_lshl_b32 s{s_t1}, s{s_nw}, 1")
                a(f"s_add_u32 s{s_t0}, s{s_t0}, s{s_t1}")
                a(f"s_add_u32 s{s_t0}, s{s_t0}, {epi[2][1]}")
                for ct in range(CT):
                    cr = C_reg(rt, ct)
                    rr = vR + (rt * CT + ct) * 2
                    tt = t + 4 * ((rt * CT + ct) % 4)
                    a(f"v_cvt_pk_bf16_f32 v{tt}, v{cr}, v{cr + 1}")
                    a(f"v_cvt_pk_bf16_f32 v{tt + 1}, v{cr + 2}, v{cr + 3}")
                    a.nop(1)
                    a(f"v_lshlrev_b32 v{cr}, 16, v{tt}")
                    a(f"v_and_b32 v{cr + 1}, 0xffff0000, v{tt}")
                    a(f"v_lshlrev_b32 v{cr + 2}, 16, v{tt + 1}")
                    a(f"v_and_b32 v{cr + 3}, 0xffff0000, v{tt + 1}")
                    a(f"v_lshlrev_b32 v{tt + 2}, 16, v{rr}")
                    a(f"v_and_b32 v{tt + 3}, 0xffff0000, v{rr}")
                    a(f"v_add_f32 v{cr}, v{cr}, v{tt + 2}")
                    a(f"v_add_f32 v{cr + 1}, v{cr + 1}, v{tt + 3}")
                    a(f"v_lshlrev_b32 v{tt + 2}, 16, v{rr + 1}")
                    a(f"v_and_b32 v{tt + 3}, 0xffff0000, v{rr + 1}")
                    a(f"v_add_f32 v{cr + 2}, v{cr + 2}, v{tt + 2}")
                    a(f"v_add_f32 v{cr + 3}, v{cr + 3}, v{tt + 3}")
                    a(f"v_cvt_pk_bf16_f32 v{tt}, v{cr}, v{cr + 1}")
                    a(f"v_cvt_pk_bf16_f32 v{tt + 1}, v{cr + 2}, v{cr + 3}")
                    a(f"buffer_store_dwordx2 {vr(tt, 2)}, v12, s[{sSO}:{sSO + 3}], s{s_t0} offen offset:{32 * ct}")
        elif epi[0] == "relu":
            for ct in range(CT):
                a(f"s_add_u32 s{s_t2}, s{s_nw}, {16 * ct}")
                a(f"s_cmp_ge_u32 s{s_t2}, {N}")
                a(f"s_cbranch_scc1 {name}_skip{ct}")
                for rt in range(RT):
                    cr = C_reg(rt, ct)
                    tt = t + 2 * ((rt * CT + ct) % 8)
                    for i in range(4):
                        a(f"v_max_f32 v{cr + i}, 0, v{cr + i}")
                    a(f"v_cvt_pk_bf16_f32 v{tt}, v{cr}, v{cr + 1}")
                    a(f"v_cvt_pk_bf16_f32 v{tt + 1}, v{cr + 2}, v{cr + 3}")
                    a(f"s_add_u32 s{s_t0}, s{s_mw}, {16 * rt}")
                    a(f"s_mul_i32 s{s_t0}, s{s_t0}, {DFF * 2}")
                    a(f"s_lshl_b32 s{s_t1}, s{s_nw}, 1")
                    a(f"s_add_u32 s{s_t0}, s{s_t0}, s{s_t1}")
                    a(f"s_add_u32 s{s_t0}, s{s_t0}, {WS_H1}")
                    a(f"buffer_store_dwordx2 {vr(tt, 2)}, v12, s[{sSO}:{sSO + 3}], s{s_t0} offen offset:{32 * ct}")
                a.label(f"{name}_skip{ct}")

    if epi[0] == "qkv":
        variants = {}
        for tn in range(tiles_n):
            o = tuple("W" if (tn * BN + 16 * ct) < 1024 else "X" for ct in range(CT))
            variants.setdefault(o, []).append(tn)
        keys = list(variants.keys())
        saved = list(vm.q)
        for vi, o in enumerate(keys):
            last_tn = max(variants[o])
            if vi < len(keys) - 1:
                a(f"s_cmp_gt_u32 s{s_n0}, {last_tn * BN}")
                a(f"s_cbranch_scc1 {name}_var{vi + 1}")
            vm.q = list(saved)
            mainloop(o)
            epilogue(o)
            stamp(a, vm, 8)
            a("s_endpgm")
            if vi < len(keys) - 1:
                a.label(f"{name}_var{vi + 1}")
    else:
        o = tuple("W" for _ in range(CT))
        mainloop(o)
        epilogue(o)
        stamp(a, vm, 8)
    a.label(f"{name}_end")
    a("s_endpgm")
    return a.lines, descriptor(name, 256 if STAMPS else nvgpr, 56), lds_bytes


def attn_kernel(name):
    a = Asm()
    vm = VM(a)
    NT = 17
    NKEY = 320
    L_K = 0
    L_V = NKEY * 128
    L_Q = L_V + 64 * 640
    lds_bytes = L_Q + 64 * 128
    vS = 32
    vP = vS + 4 * NT
    vF = vP + 36
    vEnd = vF + 36
    s_w, s_q0, s_hg, s_t0, s_t1, s_t2, s_kb, s_qt, s_h = 24, 25, 26, 27, 28, 29, 30, 31, 32
    header(a, name)
    a("s_cmp_ge_u32 s2, 256")
    a(f"s_cbranch_scc1 {name}_end")
    a(f"s_load_dwordx2 s[4:5], s[0:1], {KA_WS}")
    a("v_lshrrev_b32 v1, 6, v0")
    a("v_and_b32 v2, 63, v0")
    a.nop(1)
    a(f"v_readfirstlane_b32 s{s_w}, v1")
    a("v_and_b32 v3, 15, v2")
    a("v_lshrrev_b32 v4, 4, v2")
    a(f"s_and_b32 s{s_q0}, s2, 7")
    a(f"s_lshl_b32 s{s_q0}, s{s_q0}, 2")
    a(f"s_lshr_b32 s{s_t0}, s2, 6")
    a(f"s_add_u32 s{s_q0}, s{s_q0}, s{s_t0}")
    a(f"s_lshl_b32 s{s_q0}, s{s_q0}, 6")
    a(f"s_bfe_u32 s{s_hg}, s2, 0x30003")
    a(f"s_sub_i32 s{s_kb}, s{s_q0}, 256")
    a("s_waitcnt lgkmcnt(0)")
    srd(a, 8, 4, WS_QK + S * 2048, 0)
    srd(a, 12, 4, WS_VT + 512 * 4096, 0)
    srd(a, 16, 4, WS_O + S * 1024, 0)
    if STAMPS:
        a("s_mov_b32 s34, s4")
        a("s_mov_b32 s35, s5")
    stamp(a, vm, 0)
    a("v_lshrrev_b32 v5, 3, v2")
    a("v_and_b32 v6, 7, v2")
    a(f"s_mul_i32 s{s_t0}, s{s_w}, 40")
    a(f"s_lshl_b32 s{s_t1}, s{s_hg}, 7")
    for i in range(5):
        a(f"v_add_u32 v7, s{s_t0}, v5")
        a(f"v_add_u32 v7, {8 * i}, v7")
        a("v_bfe_u32 v8, v7, 1, 3")
        a("v_xor_b32 v8, v8, v6")
        a(f"v_add_u32 v7, s{s_kb}, v7")
        a("v_max_i32 v7, 0, v7")
        a("v_lshlrev_b32 v7, 11, v7")
        a("v_lshl_add_u32 v7, v8, 4, v7")
        a(f"s_lshl_b32 s{s_t2}, s{s_t0}, 7")
        a(f"s_add_u32 s{s_t2}, s{s_t2}, {L_K + i * 1024}")
        a(f"s_mov_b32 m0, s{s_t2}")
        a(f"s_add_u32 s40, s{s_t1}, 1024")
        a("buffer_load_dwordx4 v7, s[8:11], s40 offen lds")
        vm.issue("K")
    a(f"s_lshl_b32 s{s_t1}, s{s_hg}, 18")
    a(f"s_add_u32 s{s_t1}, s{s_t1}, {WS_VT}")
    a(f"s_mul_i32 s{s_t0}, s{s_w}, 320")
    a("s_mov_b32 s41, 1639")
    for i in range(5):
        a(f"v_add_u32 v7, s{s_t0}, v2")
        a(f"v_add_u32 v7, {64 * i}, v7")
        a("v_mul_lo_u32 v8, v7, s41")
        a("v_lshrrev_b32 v8, 16, v8")
        a("v_mul_u32_u24 v9, 40, v8")
        a("v_sub_u32 v9, v7, v9")
        a("v_bfe_u32 v10, v8, 1, 3")
        a("v_xor_b32 v9, v9, v10")
        a("v_lshlrev_b32 v9, 3, v9")
        a(f"v_add_u32 v9, s{s_kb}, v9")
        a("v_max_i32 v9, 0, v9")
        a("v_lshlrev_b32 v9, 1, v9")
        a("v_lshl_add_u32 v9, v8, 12, v9")
        a(f"s_lshl_b32 s{s_t2}, s{s_t0}, 4")
        a(f"s_add_u32 s{s_t2}, s{s_t2}, {L_V + i * 1024}")
        a(f"s_mov_b32 m0, s{s_t2}")
        a(f"buffer_load_dwordx4 v9, s[12:15], s{s_t1} offen lds")
        vm.issue("V")
    a(f"s_lshl_b32 s{s_t0}, s{s_w}, 3")
    a(f"v_add_u32 v7, s{s_t0}, v5")
    a("v_bfe_u32 v8, v7, 1, 3")
    a("v_xor_b32 v8, v8, v6")
    a(f"v_add_u32 v7, s{s_q0}, v7")
    a("v_lshlrev_b32 v7, 11, v7")
    a("v_lshl_add_u32 v7, v8, 4, v7")
    a(f"s_lshl_b32 s{s_t2}, s{s_w}, 10")
    a(f"s_add_u32 s{s_t2}, s{s_t2}, {L_Q}")
    a(f"s_mov_b32 m0, s{s_t2}")
    a(f"s_lshl_b32 s40, s{s_hg}, 7")
    a("buffer_load_dwordx4 v7, s[8:11], s40 offen lds")
    vm.issue("Q")
    a("v_lshlrev_b32 v7, 2, v4")
    a("s_mov_b32 s42, 0xf149f2ca")
    a("v_mov_b32 v10, s42")
    for r in range(4):
        a(f"v_add_u32 v11, {r}, v7")
        a("v_cmp_le_u32 vcc, v11, v3")
        a.nop(2)
        a(f"v_cndmask_b32 v{12 + r}, v10, 0, vcc")
        a(f"v_cndmask_b32 v{24 + r}, 0, v10, vcc")
    a("v_lshlrev_b32 v31, 10, v3")
    a("v_lshl_add_u32 v31, v4, 3, v31")
    stamp(a, vm, 1)
    a("s_waitcnt vmcnt(0)")
    stamp(a, vm, 2)
    a("s_barrier")
    stamp(a, vm, 3)
    a(f"s_and_b32 s{s_h}, s{s_w}, 3")
    a(f"s_lshr_b32 s{s_qt}, s{s_w}, 2")
    a(f"s_lshl_b32 s{s_qt}, s{s_qt}, 1")
    a(f"s_mov_b32 s43, 0")
    a.label(f"{name}_task")
    a(f"s_lshl_b32 s{s_t0}, s{s_h}, 1")
    a("v_lshrrev_b32 v7, 1, v4")
    a(f"v_add_u32 v7, s{s_t0}, v7")
    a("v_lshrrev_b32 v8, 1, v3")
    a("v_xor_b32 v7, v7, v8")
    a("v_lshlrev_b32 v7, 4, v7")
    a("v_lshl_add_u32 v7, v3, 7, v7")
    a("v_and_b32 v9, 1, v4")
    a("v_lshl_add_u32 v7, v9, 3, v7")
    a(f"s_lshl_b32 s{s_t0}, s{s_qt}, 11")
    a(f"v_add_u32 v28, s{s_t0}, v7")
    a(f"v_add_u32 v29, {L_Q}, v28")
    a("ds_read_b64 v[8:9], v29")
    for t in range(NT):
        a(f"ds_read_b64 {vr(vF + 2 * t, 2)}, v28 offset:{t * 2048}")
        if t == 12:
            a("s_waitcnt lgkmcnt(8)")
    a(f"s_mul_i32 s{s_t0}, s{s_h}, {16 * 640}")
    a(f"s_add_u32 s{s_t0}, s{s_t0}, {L_V}")
    a("v_mul_u32_u24 v30, 640, v3")
    a(f"v_add_u32 v30, s{s_t0}, v30")
    a("v_and_b32 v11, 1, v4")
    a("v_lshl_add_u32 v30, v11, 3, v30")
    a("v_lshrrev_b32 v11, 1, v4")
    a("v_lshrrev_b32 v7, 1, v3")
    for r in range(4):
        a(f"v_mov_b32 v{20 + r}, 0")
        a(f"v_mov_b32 v{16 + r}, v{24 + r}")
    a(f"s_lshl_b32 s{s_t1}, s{s_qt}, 4")
    a(f"s_add_i32 s{s_t1}, s{s_t1}, s{s_kb}")
    a("s_waitcnt lgkmcnt(0)")
    for t in range(NT - 1, -1, -1):
        cb = 12 if t == NT - 1 else (16 if t == 0 else 20)
        if t < NT - 1:
            a(f"s_add_i32 s{s_t0}, s{s_t1}, {16 * t}")
            a(f"s_cmp_ge_i32 s{s_t0}, 0")
            a(f"s_cbranch_scc1 {name}_ok{t}")
            a.nop(3)
            for r in range(4):
                a(f"v_mov_b32 v{20 + r}, v10")
                a(f"v_mov_b32 v{16 + r}, v10")
            a.nop(2)
            a.label(f"{name}_ok{t}")
        a(f"v_mfma_f32_16x16x16_bf16 {vr(vS + 4 * t, 4)}, {vr(vF + 2 * t, 2)}, v[8:9], {vr(cb, 4)}")
    stamp(a, vm, 4)
    a(f"s_lshl_b32 s{s_t0}, s{s_qt}, 1")
    a.nop(4)
    for t in range(NT):
        a(f"v_add_u32 v9, {2 * t}, v11")
        a(f"v_add_u32 v9, s{s_t0}, v9")
        a("v_xor_b32 v9, v9, v7")
        a("v_lshl_add_u32 v9, v9, 4, v30")
        a(f"ds_read_b64 {vr(vF + 2 * t, 2)}, v9")
        if t == 12:
            a("s_waitcnt lgkmcnt(8)")
    a(f"v_max3_f32 v8, v{vS}, v{vS + 1}, v{vS + 2}")
    a(f"v_max3_f32 v9, v{vS + 3}, v{vS + 4}, v{vS + 5}")
    i = 6
    k = 0
    while i + 1 < 4 * NT:
        a(f"v_max3_f32 v{8 + (k & 1)}, v{8 + (k & 1)}, v{vS + i}, v{vS + i + 1}")
        i += 2
        k += 1
    a("v_max_f32 v8, v8, v9")
    for sw in ("v_permlane16_swap_b32", "v_permlane32_swap_b32"):
        a("v_mov_b32 v9, v8")
        a.nop(2)
        a(f"{sw} v8, v9")
        a.nop(2)
        a("v_max_f32 v8, v8, v9")
    stamp(a, vm, 5)
    a("s_mov_b32 s41, 0x3eb8aa3b")
    a("v_mul_f32 v9, s41, v8")
    a("v_sub_f32 v9, 0, v9")
    a("v_mov_b32 v8, s41")
    for t in range(NT):
        for i in range(4):
            a(f"v_fma_f32 v{vS + 4 * t + i}, v{vS + 4 * t + i}, v8, v9")
        for i in range(4):
            a(f"v_exp_f32 v{vS + 4 * t + i}, v{vS + 4 * t + i}")
        if t > 0:
            tp = t - 1
            a(f"v_cvt_pk_bf16_f32 v{vP + 2 * tp}, v{vS + 4 * tp}, v{vS + 4 * tp + 1}")
            a(f"v_cvt_pk_bf16_f32 v{vP + 2 * tp + 1}, v{vS + 4 * tp + 2}, v{vS + 4 * tp + 3}")
    a.nop(1)
    tp = NT - 1
    a(f"v_cvt_pk_bf16_f32 v{vP + 2 * tp}, v{vS + 4 * tp}, v{vS + 4 * tp + 1}")
    a(f"v_cvt_pk_bf16_f32 v{vP + 2 * tp + 1}, v{vS + 4 * tp + 2}, v{vS + 4 * tp + 3}")
    stamp(a, vm, 6)
    a("s_mov_b32 s41, 0x3f803f80")
    for r in range(4):
        a(f"v_mov_b32 v{vS + r}, s41")
        a(f"v_mov_b32 v{vS + 4 + r}, 0")
        a(f"v_mov_b32 v{vS + 8 + r}, 0")
    a("s_waitcnt lgkmcnt(0)")
    a.nop(2)
    vO, vL = vS + 4, vS + 8
    for p in range(8):
        a(f"v_mfma_f32_16x16x32_bf16 {vr(vO, 4)}, {vr(vF + 4 * p, 4)}, {vr(vP + 4 * p, 4)}, {vr(vO, 4)}")
        a(f"v_mfma_f32_16x16x32_bf16 {vr(vL, 4)}, {vr(vS, 4)}, {vr(vP + 4 * p, 4)}, {vr(vL, 4)}")
    a.nop(4)
    a(f"v_mfma_f32_16x16x16_bf16 {vr(vO, 4)}, {vr(vF + 32, 2)}, {vr(vP + 32, 2)}, {vr(vO, 4)}")
    a(f"v_mfma_f32_16x16x16_bf16 {vr(vL, 4)}, {vr(vS, 2)}, {vr(vP + 32, 2)}, {vr(vL, 4)}")
    a.nop(10)
    a(f"v_rcp_f32 v{vL}, v{vL}")
    a.nop(1)
    for r in range(4):
        a(f"v_mul_f32 v{vO + r}, v{vO + r}, v{vL}")
    a(f"v_cvt_pk_bf16_f32 v8, v{vO}, v{vO + 1}")
    a(f"v_cvt_pk_bf16_f32 v9, v{vO + 2}, v{vO + 3}")
    a(f"s_lshl_b32 s{s_t0}, s{s_qt}, 4")
    a(f"s_add_u32 s{s_t0}, s{s_t0}, s{s_q0}")
    a(f"s_lshl_b32 s{s_t0}, s{s_t0}, 10")
    a(f"s_lshl_b32 s{s_t1}, s{s_hg}, 2")
    a(f"s_add_u32 s{s_t1}, s{s_t1}, s{s_h}")
    a(f"s_lshl_b32 s{s_t1}, s{s_t1}, 5")
    a(f"s_add_u32 s{s_t0}, s{s_t0}, s{s_t1}")
    a(f"s_add_u32 s{s_t0}, s{s_t0}, {WS_O}")
    a(f"buffer_store_dwordx2 v[8:9], v31, s[16:19], s{s_t0} offen")
    stamp(a, vm, 7)
    a(f"s_add_u32 s{s_qt}, s{s_qt}, 1")
    a("s_add_u32 s43, s43, 1")
    a("s_cmp_lt_u32 s43, 2")
    a.nop(2)
    a(f"s_cbranch_scc1 {name}_task")
    a.label(f"{name}_end")
    a("s_endpgm")
    return a.lines, descriptor(name, 256 if STAMPS else vEnd, 56), lds_bytes


def main():
    global STAMPS
    import os
    STAMPS = bool(os.environ.get("STAMPS"))
    from gemm5 import gemm5 as gemm3
    kernels = []
    kernels.append(("k1_qkv_kernel", 256, 512, gemm3(
        "k1_qkv_kernel", a_src=(KA_X, 0), lda=1024, a_bytes=S * 1024, w_ka=KA_WQKV, ldw=3072,
        w_bytes=512 * 3072, N=1536, nks=16, BM=128, BN=96, WGM=4, WGN=1, NB=5, ln=True,
        epi=("qkv",), tiles_n=16, ntiles=256, pf=(KA_WO, 512 * 1024))))
    from attn3 import attn3
    kernels.append(("k2_attn_kernel", 256, 1024, attn3("k2_attn_kernel")))
    NL = int(os.environ.get("NL", "4"))
    kernels.append(("k3_wo_kernel", 256, 256 + 64 * NL, gemm3(
        "k3_wo_kernel", a_src=(KA_WS, WS_O), lda=1024, a_bytes=S * 1024, w_ka=KA_WO, ldw=1024,
        w_bytes=512 * 1024, N=512, nks=16, BM=64, BN=64, WGM=2, WGN=2, NB=8, ln=False,
        epi=("resid", (KA_X, 0), (KA_WS, WS_H)), tiles_n=8, ntiles=256, STG=2, pf=(KA_W1, 512 * DFF * 2), NL=NL)))
    kernels.append(("k4_w1_kernel", 240, 512, gemm3(
        "k4_w1_kernel", a_src=(KA_WS, WS_H), lda=1024, a_bytes=S * 1024, w_ka=KA_W1, ldw=DFF * 2,
        w_bytes=512 * DFF * 2, N=DFF, nks=16, BM=128, BN=96, WGM=4, WGN=1, NB=5, ln=True,
        epi=("relu",), tiles_n=15, ntiles=240, pf=(KA_W2, DFF * 1024))))
    kernels.append(("k5_w2_kernel", 256, 256 + 64 * NL, gemm3(
        "k5_w2_kernel", a_src=(KA_WS, WS_H1), lda=1408 * 2, a_bytes=S * 1408 * 2, w_ka=KA_W2, ldw=1024,
        w_bytes=DFF * 1024, N=512, nks=44, BM=64, BN=64, WGM=2, WGN=2, NB=8,
        ln=False, epi=("resid", (KA_WS, WS_H), (KA_OUT, 0)), tiles_n=8, ntiles=256, STG=2, NL=NL)))

    out = []
    out.append("; preLN -> sliding-window attention -> residual -> preLN -> ReLU FFN -> residual (generated by gen.py)")
    out.append("; kernarg: 0 A_x, 8 A_wqkv, 16 A_wo, 24 B_x, 32 B_w1, 40 B_w2, 48 d_out, 56 d_debug, 64 d_ws")
    for name, grid, blk, (lines, desc, lds) in kernels:
        out.append(f"; @launch kernel={name} grid=({grid},1,1) block=({blk},1,1) lds={lds}")
    out.append('.amdgcn_target "amdgcn-amd-amdhsa--gfx950"')
    out.append(".text")
    for name, grid, blk, (lines, desc, lds) in kernels:
        out.extend(lines)
    out.append('.section .rodata,"a"')
    for name, grid, blk, (lines, desc, lds) in kernels:
        out.append(".p2align 6")
        out.append(desc)
    path = sys.argv[1] if len(sys.argv) > 1 else \
        "sequential_preLN__sliding_block__dense_activation_relu__prompt.s"
    open(path, "w").write("\n".join(out) + "\n")


if __name__ == "__main__":
    import gen
    gen.main()
```
